```python
import torch

def _softmax(x, axis=-1):
    return torch.softmax(x, dim=axis)
def _gelu(x):
    return torch.nn.functional.gelu(x, approximate="tanh")
def _silu(x):
    return torch.nn.functional.silu(x)
def _sigmoid(x):
    return torch.sigmoid(x)
def _layernorm(x, axis=-1, eps=1e-5):
    m = x.mean(dim=axis, keepdim=True)
    v = x.var(dim=axis, keepdim=True, unbiased=False)
    return (x - m) / torch.sqrt(v + eps)
def _scatter_add(tgt, idx, src, axis=0):
    return tgt.clone().index_add_(axis, idx, src)
def _segment_sum(src, seg, n):
    out = torch.zeros((n,) + src.shape[1:], dtype=src.dtype)
    return out.index_add_(0, seg, src)
def _pad(x, pw):
    flat = tuple(v for pair in reversed(pw) for v in pair)
    return torch.nn.functional.pad(x, flat)

kernel_name = 'standalone__softmax_full_bidir__sampling'

def setup_inputs():

    _w = (lambda a: (lambda t: t.to(torch.bfloat16) if t.is_floating_point() else t)(torch.as_tensor(a)))
    B, H, Sq, Skv, Dh = 8, 16, 16, 2048, 256
    return {
        "q": _w((lambda *s: torch.randn(*s, dtype=torch.bfloat16) * 0.8)(B, H, Sq, Dh)),
        "k": _w((lambda *s: torch.randn(*s, dtype=torch.bfloat16) * 0.8)(B, H, Skv, Dh)),
        "v": _w((lambda *s: torch.randn(*s, dtype=torch.bfloat16) * 0.05)(B, H, Skv, Dh)),
    }

def reference(q, k, v):
    scale = q.shape[-1] ** -0.5
    scores = torch.einsum('bhqd,bhkd->bhqk', q, k) * scale
    attn = _softmax(scores, axis=-1)
    return torch.einsum('bhqk,bhkd->bhqd', attn, v)
```

```python
import sys, math, struct

NAME = 'standalone__softmax_full_bidir__sampling_kernel'

def f32(x): return '0x%08x' % struct.unpack('<I', struct.pack('<f', x))[0]

class Emit:
    def __init__(self): self.l = []
    def __call__(self, s): self.l.append('    ' + s)
    def label(self, s): self.l.append(s + ':')
    def c(self, s): self.l.append('    ; ' + s)
    def text(self): return '\n'.join(self.l) + '\n'

class VM:
    def __init__(self, e): self.e = e; self.ops = []
    def issue(self, tag): self.ops.append(tag)
    def after(self, tag):
        idx = max(i for i, t in enumerate(self.ops) if t == tag)
        return len(self.ops) - 1 - idx
    def wait(self, tag, extra=''):
        n = self.after(tag)
        assert n <= 63
        self.e(f's_waitcnt vmcnt({n}){extra}')

SLOT_POS = [0, 65536, 32768, 98304]
PBASE = 131072
NPE = 14
TAB_M = PBASE + NPE * 2048
TAB_L = TAB_M + 512
LDS_BYTES = TAB_L + 512

def gen(TA=15, name=NAME, stamps=False, nt='nt', kflag_step=3, bflag_step=8):
    TB = 32 - TA
    e = Emit()
    SK, SV, SQ_, SO, SW, SD = 's[16:19]', 's[20:23]', 's[24:27]', 's[28:31]', 's[32:35]', 's[36:39]'
    sWave, sHead, sRole, sLdsW, sOff, sT0, sT1, sC, sHalf = 's40', 's41', 's42', 's43', 's44', 's45', 's46', 's47', 's48'
    vLane = 1
    vKD = 2
    vVD = 6
    vKR = 10
    vVR = 14
    vPR = 18; vPW = 19; vTW = 20; vTR = 21
    vT = 22
    vQ = 32
    vKF = 64
    vS = 96
    vP = 132
    vVF = 152
    vPF = 168
    vAcc = 176
    vPart = 184
    vM = 194; vL = 195; vWS = 196; vWS4 = 197; vOut = 198; vLB = 199; vFlag = 200
    NV = 208
    C = 0.0625 * math.log2(math.e)

    def stamp(idx):
        if not stamps: return
        e(f's_memrealtime s[50:51]')
        e(f's_waitcnt lgkmcnt(0)')
        e(f'v_writelane_b32 v{NV-1}, s50, {idx}')

    e(f's_cmp_ge_u32 s2, 256')
    e(f's_cbranch_scc1 L_end')
    e(f's_load_dwordx8 s[4:11], s[0:1], 0')
    e(f's_load_dwordx4 s[12:15], s[0:1], 32')
    e(f'v_lshrrev_b32 v{vT}, 6, v0')
    e(f'v_and_b32 v{vLane}, 63, v0')
    e(f's_lshr_b32 {sHead}, s2, 4')
    e(f'v_readfirstlane_b32 {sWave}, v{vT}')
    e(f's_lshl_b32 {sHead}, {sHead}, 3')
    e(f's_and_b32 {sT0}, s2, 7')
    e(f's_add_u32 {sHead}, {sHead}, {sT0}')
    e(f's_lshr_b32 {sRole}, s2, 3')
    e(f's_and_b32 {sRole}, {sRole}, 1')
    e(f's_lshl_b32 {sLdsW}, {sWave}, 12')
    e(f's_lshl_b32 {sT0}, {sHead}, 20')
    e(f's_mul_i32 {sT1}, {sRole}, {TA*32768}')
    e(f's_add_u32 {sT0}, {sT0}, {sT1}')
    e(f's_add_u32 {sT0}, {sT0}, {sLdsW}')
    e(f'v_lshrrev_b32 v{vT}, 5, v{vLane}')
    e(f'v_and_b32 v{vT+1}, 31, v{vLane}')
    e(f's_and_b32 {sT1}, {sWave}, 1')
    e(f's_lshl_b32 {sT1}, {sT1}, 3')
    e(f'v_xor_b32 v{vT+2}, v{vT}, v{vT+1}')
    e(f'v_xor_b32 v{vT+3}, {sT1}, v{vT+2}')
    e(f'v_lshlrev_b32 v{vT+3}, 4, v{vT+3}')
    e(f'v_lshl_add_u32 v{vKD}, v{vT}, 9, v{vT+3}')
    for i in range(1, 4):
        e(f'v_xor_b32 v{vKD+i}, {2*i*16}, v{vKD}')
    e(f's_waitcnt lgkmcnt(0)')
    e(f's_add_u32 s16, s6, {sT0}')
    e(f's_addc_u32 s17, s7, 0')
    e(f's_mov_b32 s18, {max(TA,TB)*32768}')
    e(f's_mov_b32 s19, 0x20000')
    e(f's_add_u32 s20, s8, {sT0}')
    e(f's_addc_u32 s21, s9, 0')
    e(f's_mov_b32 s22, {max(TA,TB)*32768}')
    e(f's_mov_b32 s23, 0x20000')

    def dma(vm, n, T):
        isK = n < T
        t = n if isK else n - T
        srd = SK if isK else SV
        vo = vKD if isK else vVD
        e(f's_add_u32 m0, {sLdsW}, {SLOT_POS[n % 4]}')
        e(f's_mov_b32 {sOff}, {t*32768}')
        for i in range(4):
            e(f'buffer_load_dwordx4 v{vo+i}, {srd}, {sOff} offen offset:{i*1024} {nt} lds')
            vm.issue(('dma', n))

    vm0 = VM(e)
    dma(vm0, 0, 99)
    e(f's_lshl_b32 {sT1}, {sWave}, 1')
    e(f'v_xor_b32 v{vT+3}, {sT1}, v{vT+2}')
    e(f'v_lshlrev_b32 v{vT+3}, 4, v{vT+3}')
    e(f'v_lshl_add_u32 v{vT+4}, v{vT}, 9, v{vT+3}')
    e(f's_lshl_b32 {sT0}, {sHead}, 13')
    e(f's_add_u32 s24, s4, {sT0}')
    e(f's_addc_u32 s25, s5, 0')
    e(f's_mov_b32 s26, 8192')
    e(f's_mov_b32 s27, 0x20000')
    e(f's_lshl_b32 {sT1}, {sWave}, 10')
    e(f's_add_u32 m0, {sT1}, {PBASE}')
    e(f's_nop 0')
    e(f'buffer_load_dwordx4 v{vT+4}, {SQ_}, {sT1} offen lds')
    vm0.issue(('dma', 0))
    for n in (1, 2, 3): dma(vm0, n, 99)
    stamp(0)
    e(f's_add_u32 s28, s10, {sT0}')
    e(f's_addc_u32 s29, s11, 0')
    e(f's_mov_b32 s30, 8192')
    e(f's_mov_b32 s31, 0x20000')
    e(f's_lshl_b32 {sT0}, {sHead}, 15')
    e(f's_add_u32 {sT0}, {sT0}, {sLdsW}')
    e(f's_add_u32 s32, s14, {sT0}')
    e(f's_addc_u32 s33, s15, 0')
    e(f's_mov_b32 s34, 4096')
    e(f's_mov_b32 s35, 0x20000')
    e(f's_mov_b32 s36, s12')
    e(f's_mov_b32 s37, s13')
    e(f's_mov_b32 s38, 256')
    e(f's_mov_b32 s39, 0x20000')
    e(f's_mov_b32 {sC}, {f32(C)}')
    e(f's_lshr_b32 {sHalf}, {sWave}, 2')
    e(f'v_lshlrev_b32 v{vT+3}, 1, v{vT}')
    e(f'v_xor_b32 v{vT+3}, v{vT+3}, v{vT+1}')
    e(f'v_lshlrev_b32 v{vT+3}, 4, v{vT+3}')
    e(f'v_lshl_add_u32 v{vVD}, v{vT}, 9, v{vT+3}')
    for i in range(1, 4):
        e(f'v_xor_b32 v{vVD+i}, {4*i*16}, v{vVD}')
    e(f'v_and_b32 v{vT+5}, 15, v{vLane}')
    e(f'v_lshrrev_b32 v{vT+6}, 4, v{vLane}')
    e(f'v_xor_b32 v{vT+7}, v{vT+5}, v{vT+6}')
    e(f'v_lshlrev_b32 v{vT+7}, 4, v{vT+7}')
    e(f'v_lshl_add_u32 v{vT+7}, v{vT+5}, 9, v{vT+7}')
    e(f's_and_b32 {sT0}, {sWave}, 3')
    e(f's_lshl_b32 {sT0}, {sT0}, 13')
    e(f's_lshl_b32 {sT1}, {sHalf}, 16')
    e(f's_add_u32 {sT0}, {sT0}, {sT1}')
    for jj in range(4):
        e(f'v_xor_b32 v{vVF+jj}, {jj*64}, v{vT+7}')
        e(f'v_add_u32 v{vKR+jj}, {sT0}, v{vVF+jj}')
        e(f'v_add_u32 v{vVF+jj}, {PBASE}, v{vVF+jj}')
    e(f'v_lshrrev_b32 v{vT+7}, 2, v{vLane}')
    e(f'v_and_b32 v{vT+8}, 7, v{vT+7}')
    e(f'v_lshlrev_b32 v{vT+8}, 1, v{vT+8}')
    e(f'v_bfe_u32 v{vT+9}, v{vLane}, 1, 1')
    e(f's_lshl_b32 {sT0}, {sWave}, 2')
    e(f'v_or_b32 v{vT+9}, {sT0}, v{vT+9}')
    e(f'v_xor_b32 v{vT+8}, v{vT+8}, v{vT+9}')
    e(f'v_lshlrev_b32 v{vT+8}, 4, v{vT+8}')
    e(f'v_lshl_add_u32 v{vT+8}, v{vT+7}, 9, v{vT+8}')
    e(f'v_and_b32 v{vT+9}, 1, v{vLane}')
    e(f'v_lshl_add_u32 v{vVR}, v{vT+9}, 3, v{vT+8}')
    e(f'v_xor_b32 v{vVR+1}, 32, v{vVR}')
    e(f'v_add_u32 v{vVR+2}, 0x10000, v{vVR}')
    e(f'v_add_u32 v{vVR+3}, 0x10000, v{vVR+1}')
    e(f'v_lshlrev_b32 v{vWS}, 4, v{vLane}')
    e(f'v_lshlrev_b32 v{vWS4}, 2, v{vLane}')
    e(f'v_add_u32 v{vPR}, {PBASE}, v{vWS}')
    e(f's_lshl_b32 {sT0}, {sHalf}, 11')
    e(f's_bfe_u32 {sT1}, {sWave}, 0x10001')
    e(f's_lshl_b32 {sT1}, {sT1}, 10')
    e(f's_add_u32 {sT0}, {sT0}, {sT1}')
    e(f's_and_b32 {sT1}, {sWave}, 1')
    e(f's_lshl_b32 {sT1}, {sT1}, 3')
    e(f's_add_u32 {sT0}, {sT0}, {sT1}')
    e(f'v_add_u32 v{vPW}, {sT0}, v{vPR}')
    e(f'v_lshlrev_b32 v{vTR}, 5, v{vT+5}')
    e(f'v_add_u32 v{vTR}, {TAB_M}, v{vTR}')
    e(f's_lshl_b32 {sT0}, {sWave}, 2')
    e(f'v_add_u32 v{vTW}, {sT0}, v{vTR}')
    e(f'v_lshlrev_b32 v{vOut}, 9, v{vT+5}')
    e(f'v_lshl_add_u32 v{vOut}, v{vT+6}, 3, v{vOut}')
    e(f's_lshl_b32 {sT0}, {sWave}, 6')
    e(f'v_add_u32 v{vOut}, {sT0}, v{vOut}')
    e(f's_and_b32 {sT0}, {sHead}, 63')
    e(f's_lshl_b32 {sT0}, {sT0}, 2')
    e(f'v_mov_b32 v{vFlag}, {sT0}')
    e(f's_lshr_b32 {sT0}, {sHead}, 6')
    e(f's_lshl_b32 s49, 1, {sT0}')
    for r in range(8): e(f'v_mov_b32 v{vAcc+r}, 0')
    e(f's_cmp_eq_u32 {sRole}, 1')
    e(f's_cbranch_scc1 L_roleB')

    def body(role):
        T = TB if role else TA
        R = 'B' if role else 'A'
        vm = VM(e); vm.ops = list(vm0.ops)
        NT = (T + 1) // 2
        if T % 2:
            for r in range(4): e(f'v_mov_b32 v{vS+4*(NT-1)+r}, 0xff800000')
        if role == 0:
            for r in range(4): e(f'v_mov_b32 v{vPart+r}, -1')
            e(f'buffer_store_dwordx4 v[{vPart}:{vPart+3}], v{vWS}, {SW}, 0 offen sc1'); vm.issue('poison')
            e(f'buffer_store_dwordx4 v[{vPart}:{vPart+3}], v{vWS}, {SW}, 0 offen offset:1024 sc1'); vm.issue('poison')
            e(f'buffer_store_dword v{vPart}, v{vWS4}, {SW}, 0 offen offset:2048 sc1'); vm.issue('poison')
        issued = 4
        for n in range(T):
            e.c(f'---- {R} K step {n}')
            if role == 0 and n == kflag_step:
                vm.wait('poison')
                if vm.after(('dma', n)) < vm.after('poison'): vm.wait(('dma', n))
            else:
                vm.wait(('dma', n))
            e('s_barrier')
            if n == 0: stamp(1)
            if role == 0 and n == kflag_step:
                e(f's_cmp_lg_u32 {sWave}, 0')
                e(f's_cbranch_scc1 L_noflag_{R}')
                e(f'v_mov_b32 v{vT}, s49')
                e(f's_mov_b64 exec, 1')
                e(f'buffer_atomic_or v{vT}, v{vFlag}, {SD}, 0 offen sc1')
                e(f's_mov_b64 exec, -1')
                e.label(f'L_noflag_{R}')
            if role == 1 and n == bflag_step:
                e(f's_cmp_lg_u32 {sWave}, 0')
                e(f's_cbranch_scc1 L_nopoll_{R}')
                e(f'buffer_load_dword v{vLB}, v{vFlag}, {SD}, 0 offen sc1')
                e.label(f'L_nopoll_{R}')
                vm.issue('flagld_marker'); vm.ops.pop()
                flag_pos = len(vm.ops)
            if role == 1 and n == bflag_step + 3:
                e(f's_cmp_lg_u32 {sWave}, 0')
                e(f's_cbranch_scc1 L_flagok_{R}')
                e(f's_waitcnt vmcnt({len(vm.ops) - flag_pos})')
                e.label(f'L_flagchk_{R}')
                e(f'v_readfirstlane_b32 {sT0}, v{vLB}')
                e(f's_nop 3')
                e(f's_and_b32 {sT0}, {sT0}, s49')
                e(f's_cbranch_scc1 L_flagok_{R}')
                e(f's_sleep 8')
                e(f'buffer_load_dword v{vLB}, v{vFlag}, {SD}, 0 offen sc1')
                e(f's_waitcnt vmcnt(0)')
                e(f's_branch L_flagchk_{R}')
                e.label(f'L_flagok_{R}')
            if n >= 1 and issued < 2 * T:
                dma(vm, issued, T); issued += 1
            if n == 0:
                for j in range(8):
                    e(f'ds_read_b128 v[{vQ+4*j}:{vQ+4*j+3}], v{vVF+(j&3)} offset:{(j>>2)*256}')
            e(f's_cmp_lg_u32 {sHalf}, {n&1}')
            e(f's_cbranch_scc1 L_kskip_{R}{n}')
            so = ((n >> 1) & 1) * 32768
            for j in range(8):
                e(f'ds_read_b128 v[{vKF+4*j}:{vKF+4*j+3}], v{vKR+(j&3)} offset:{so+(j>>2)*256}')
            d = vS + 4 * (n >> 1)
            for j in range(8):
                e(f's_waitcnt lgkmcnt({7-j})')
                cin = '0' if j == 0 else f'v[{d}:{d+3}]'
                e(f'v_mfma_f32_16x16x32_bf16 v[{d}:{d+3}], v[{vKF+4*j}:{vKF+4*j+3}], v[{vQ+4*j}:{vQ+4*j+3}], {cin}')
            e.label(f'L_kskip_{R}{n}')
            if n == 0: e('s_waitcnt lgkmcnt(0)')
        e.c(f'---- {R} softmax')
        stamp(2)
        e('s_nop 7')
        e('s_nop 1')
        NS_ = 4 * NT
        e(f'v_max3_f32 v{vM}, v{vS}, v{vS+1}, v{vS+2}')
        i = 3
        while i + 1 < NS_:
            e(f'v_max3_f32 v{vM}, v{vM}, v{vS+i}, v{vS+i+1}'); i += 2
        if i < NS_: e(f'v_max_f32 v{vM}, v{vM}, v{vS+i}')
        def xg(reg, op):
            e(f'v_mov_b32 v{vT}, v{reg}')
            e('s_nop 1')
            e(f'v_permlane32_swap_b32 v{reg}, v{vT}')
            e(f'{op} v{reg}, v{reg}, v{vT}')
            e(f'v_mov_b32 v{vT}, v{reg}')
            e('s_nop 1')
            e(f'v_permlane16_swap_b32 v{reg}, v{vT}')
            e(f'{op} v{reg}, v{reg}, v{vT}')
        xg(vM, 'v_max_f32')
        e(f'ds_write_b32 v{vTW}, v{vM}')
        e('s_waitcnt lgkmcnt(0)')
        e('s_barrier')
        e(f'ds_read_b128 v[{vKF}:{vKF+3}], v{vTR}')
        e(f'ds_read_b128 v[{vKF+4}:{vKF+7}], v{vTR} offset:16')
        if issued < 2 * T:
            dma(vm, issued, T); issued += 1
        e('s_waitcnt lgkmcnt(0)')
        e(f'v_max3_f32 v{vM}, v{vKF}, v{vKF+1}, v{vKF+2}')
        e(f'v_max3_f32 v{vT}, v{vKF+3}, v{vKF+4}, v{vKF+5}')
        e(f'v_max3_f32 v{vM}, v{vM}, v{vKF+6}, v{vKF+7}')
        e(f'v_max_f32 v{vM}, v{vM}, v{vT}')
        e(f'v_mul_f32 v{vM}, {sC}, v{vM}')
        for i in range(NS_):
            e(f'v_fma_f32 v{vS+i}, v{vS+i}, {sC}, -v{vM}')
        for i in range(NS_):
            e(f'v_exp_f32 v{vS+i}, v{vS+i}')
        e('s_nop 0')
        for i in range(NT):
            e(f'v_cvt_pk_bf16_f32 v{vP+2*i}, v{vS+4*i}, v{vS+4*i+1}')
            e(f'v_cvt_pk_bf16_f32 v{vP+2*i+1}, v{vS+4*i+2}, v{vS+4*i+3}')
            if i < NPE // 2:
                e(f'ds_write_b64 v{vPW}, v[{vP+2*i}:{vP+2*i+1}] offset:{i*4096}')
        e(f'v_add_f32 v{vL}, v{vS}, v{vS+1}')
        e(f'v_add_f32 v{vT+1}, v{vS+2}, v{vS+3}')
        for i in range(4, NS_, 2):
            e(f'v_add_f32 v{vL}, v{vL}, v{vS+i}')
            e(f'v_add_f32 v{vT+1}, v{vT+1}, v{vS+i+1}')
        e(f'v_add_f32 v{vL}, v{vL}, v{vT+1}')
        xg(vL, 'v_add_f32')
        e(f'ds_write_b32 v{vTW}, v{vL} offset:512')
        stamp(3)
        for t in range(T):
            n = T + t
            e.c(f'---- {R} V step {t}')
            if role == 1 and t == T - 1:
                e(f'buffer_load_dwordx4 v[{vPart}:{vPart+3}], v{vWS}, {SW}, 0 offen sc1'); vm.issue('part')
                e(f'buffer_load_dwordx4 v[{vPart+4}:{vPart+7}], v{vWS}, {SW}, 0 offen offset:1024 sc1'); vm.issue('part')
                e(f'buffer_load_dword v{vPart+8}, v{vWS4}, {SW}, 0 offen offset:2048 sc1'); vm.issue('part')
            vm.wait(('dma', n), ' lgkmcnt(0)')
            e('s_barrier')
            if t == T - 1: stamp(4)
            if t >= 1 and issued < 2 * T:
                dma(vm, issued, T); issued += 1
            pe = (t % NPE) * 2048
            e(f'ds_read_b128 v[{vPF}:{vPF+3}], v{vPR} offset:{pe}')
            pos = SLOT_POS[n % 4]
            pair = pos >> 16; so = pos & 0xffff
            def trd(u, dt):
                for hh in range(2):
                    r = vVF + 8 * u + 4 * dt + 2 * hh
                    e(f'ds_read_b64_tr_b16 v[{r}:{r+1}], v{vVR+2*pair+dt} offset:{so+(2*u+hh)*8192}')
            trd(0, 0); trd(0, 1)
            e(f'ds_read_b128 v[{vPF+4}:{vPF+7}], v{vPR} offset:{pe+1024}')
            trd(1, 0); trd(1, 1)
            late = []
            for i in range(NPE // 2, NT):
                if t == 2 * (i - NPE // 2) + 2: late.append(i)
            nl = 0
            if t == 1:
                e(f'ds_read_b128 v[{vKF}:{vKF+3}], v{vTR} offset:512')
                e(f'ds_read_b128 v[{vKF+4}:{vKF+7}], v{vTR} offset:528'); nl += 2
            for i in late:
                e(f'ds_write_b64 v{vPW}, v[{vP+2*i}:{vP+2*i+1}] offset:{(i-NPE//2)*4096}'); nl += 1
            cnt = [7, 5, 2, 0]
            k = 0
            for u in range(2):
                for dt in range(2):
                    e(f's_waitcnt lgkmcnt({cnt[k]+nl})'); k += 1
                    a = vVF + 8 * u + 4 * dt
                    e(f'v_mfma_f32_16x16x32_bf16 v[{vAcc+4*dt}:{vAcc+4*dt+3}], v[{a}:{a+3}], v[{vPF+4*u}:{vPF+4*u+3}], v[{vAcc+4*dt}:{vAcc+4*dt+3}]')
            if t == 1:
                e('s_waitcnt lgkmcnt(0)')
                e(f'v_add_f32 v{vKF}, v{vKF}, v{vKF+1}')
                e(f'v_add_f32 v{vKF+2}, v{vKF+2}, v{vKF+3}')
                e(f'v_add_f32 v{vKF+4}, v{vKF+4}, v{vKF+5}')
                e(f'v_add_f32 v{vKF+6}, v{vKF+6}, v{vKF+7}')
                e(f'v_add_f32 v{vKF}, v{vKF}, v{vKF+2}')
                e(f'v_add_f32 v{vKF+4}, v{vKF+4}, v{vKF+6}')
                e(f'v_add_f32 v{vL}, v{vKF}, v{vKF+4}')
                e(f'v_log_f32 v{vT}, v{vL}')
                e(f'v_rcp_f32 v{vL}, v{vL}')
                e('s_nop 0')
                e(f'v_add_f32 v{vM}, v{vM}, v{vT}')
        e.c(f'---- {R} epilogue')
        if role == 0:
            e('s_nop 7')
            for r in range(8):
                e(f'v_mul_f32 v{vPart+r}, v{vAcc+r}, v{vL}')
            for r in range(8):
                e(f'v_min_u32 v{vPart+r}, -2, v{vPart+r}')
            e(f'v_min_u32 v{vPart+8}, -2, v{vM}')
            e(f'buffer_store_dwordx4 v[{vPart}:{vPart+3}], v{vWS}, {SW}, 0 offen sc1')
            e(f'buffer_store_dwordx4 v[{vPart+4}:{vPart+7}], v{vWS}, {SW}, 0 offen offset:1024 sc1')
            e(f'buffer_store_dword v{vPart+8}, v{vWS4}, {SW}, 0 offen offset:2048 sc1')
        else:
            e.label('L_chk')
            e('s_waitcnt vmcnt(0)')
            e(f'v_max3_u32 v{vT}, v{vPart}, v{vPart+1}, v{vPart+2}')
            e(f'v_max3_u32 v{vT+1}, v{vPart+3}, v{vPart+4}, v{vPart+5}')
            e(f'v_max3_u32 v{vT+2}, v{vPart+6}, v{vPart+7}, v{vPart+8}')
            e(f'v_max3_u32 v{vT}, v{vT}, v{vT+1}, v{vT+2}')
            e(f'v_cmp_eq_u32 vcc, -1, v{vT}')
            e(f's_cbranch_vccz L_got')
            e(f's_sleep 2')
            e(f'buffer_load_dwordx4 v[{vPart}:{vPart+3}], v{vWS}, {SW}, 0 offen sc1')
            e(f'buffer_load_dwordx4 v[{vPart+4}:{vPart+7}], v{vWS}, {SW}, 0 offen offset:1024 sc1')
            e(f'buffer_load_dword v{vPart+8}, v{vWS4}, {SW}, 0 offen offset:2048 sc1')
            e(f's_branch L_chk')
            e.label('L_got')
            stamp(5)
            e(f'v_sub_f32 v{vT}, v{vM}, v{vPart+8}')
            e(f'v_exp_f32 v{vT}, v{vT}')
            e('s_nop 0')
            e(f'v_add_f32 v{vT}, 1.0, v{vT}')
            e(f'v_rcp_f32 v{vT}, v{vT}')
            e('s_nop 0')
            e(f'v_sub_f32 v{vT+1}, 1.0, v{vT}')
            e(f'v_mul_f32 v{vT+1}, v{vT+1}, v{vL}')
            for r in range(8):
                e(f'v_mul_f32 v{vPart+r}, v{vPart+r}, v{vT}')
            for r in range(8):
                e(f'v_fmac_f32 v{vPart+r}, v{vAcc+r}, v{vT+1}')
            for r in range(4):
                e(f'v_cvt_pk_bf16_f32 v{vT+2+r}, v{vPart+2*r}, v{vPart+2*r+1}')
            e(f'buffer_store_dwordx2 v[{vT+2}:{vT+3}], v{vOut}, {SO}, 0 offen')
            e(f'buffer_store_dwordx2 v[{vT+4}:{vT+5}], v{vOut}, {SO}, 0 offen offset:32')
        if stamps:
            stamp(6)
            e(f's_lshl_b32 {sT0}, s2, 3')
            e(f's_add_u32 {sT0}, {sT0}, {sWave}')
            e(f's_lshl_b32 {sT0}, {sT0}, 8')
            e(f's_add_u32 {sT0}, {sT0}, 0x10000000')
            e(f's_add_u32 s52, s14, {sT0}')
            e(f's_addc_u32 s53, s15, 0')
            e(f's_mov_b32 s54, 256')
            e(f's_mov_b32 s55, 0x20000')
            e(f'buffer_store_dword v{NV-1}, v{vWS4}, s[52:55], 0 offen')
        e('s_endpgm')

    body(0)
    e.label('L_roleB')
    body(1)
    e.label('L_end')
    e('s_endpgm')
    txt = e.text().replace('L_', f'L{name[:6]}{abs(hash(name))%9973}_') if name != NAME else e.text()
    return txt, NV

HEADER = '''; Kernarg layout for this problem (48 bytes, ptrs only, base s[0:1]):
'''
def wrap(kernels, single=True):
    s = HEADER
    if single:
        s += f'; @launch grid=(256,1,1) block=(512,1,1) lds={LDS_BYTES}\n'
    else:
        for (n, t, nv) in kernels:
            s += f'; @launch kernel={n} grid=(256,1,1) block=(512,1,1) lds={LDS_BYTES}\n'
    s += '.amdgcn_target "amdgcn-amd-amdhsa--gfx950"\n.text\n'
    for (n, t, nv) in kernels:
        s += f'.globl {n}\n.p2align 8\n.type {n},@function\n{n}:\n{t}'
    s += '.section .rodata,"a"\n'
    for (n, t, nv) in kernels:
        s += f'''.p2align 6
.amdhsa_kernel {n}
  .amdhsa_next_free_vgpr {nv}
  .amdhsa_next_free_sgpr 64
  .amdhsa_accum_offset {(nv+3)//4*4}
  .amdhsa_group_segment_fixed_size 0
  .amdhsa_kernarg_size 48
  .amdhsa_user_sgpr_count 2
  .amdhsa_user_sgpr_kernarg_segment_ptr 1
  .amdhsa_system_sgpr_workgroup_id_x 1
.end_amdhsa_kernel
'''
    return s

if __name__ == '__main__':
    t, nv = gen()
    open('standalone__softmax_full_bidir__sampling.s', 'w').write(wrap([(NAME, t, nv)]))
    print('written; lds', LDS_BYTES)
```

```python
import sys, math, struct

NAME = 'standalone__softmax_full_bidir__sampling_kernel'

def f32(x): return '0x%08x' % struct.unpack('<I', struct.pack('<f', x))[0]

class Emit:
    def __init__(self): self.l = []
    def __call__(self, s): self.l.append('    ' + s)
    def label(self, s): self.l.append(s + ':')
    def c(self, s): self.l.append('    ; ' + s)
    def text(self): return '\n'.join(self.l) + '\n'

class VM:
    def __init__(self, e): self.e = e; self.ops = []
    def issue(self, tag): self.ops.append(tag)
    def after(self, tag):
        idx = max(i for i, t in enumerate(self.ops) if t == tag)
        return len(self.ops) - 1 - idx
    def wait(self, tag, extra=''):
        n = self.after(tag)
        assert n <= 63
        self.e(f's_waitcnt vmcnt({n}){extra}')

SLOT_POS = [0, 65536, 32768, 98304]
PBASE = 131072
NPE = 14
TAB_M = PBASE + NPE * 2048
TAB_L = TAB_M + 512
LDS_BYTES = TAB_L + 512

def gen(TA=15, name=NAME, stamps=False, nt='nt', kflag_step=3, bflag_step=8, qnt='', poison=True, pf=0, pfflags='', kswz=True, vswz=True, nocomp=False, strip=0, qfirst=False, noq=False, noflag=False, noend=False, stf='sc1', ldf='sc1', outf='', partstep=1, noout=False, kf=None, vf=None):
    TB = 32 - TA
    e = Emit()
    SK, SV, SQ_, SO, SW, SD = 's[16:19]', 's[20:23]', 's[24:27]', 's[28:31]', 's[32:35]', 's[36:39]'
    sWave, sHead, sRole, sLdsW, sOff, sT0, sT1, sC, sHalf = 's40', 's41', 's42', 's43', 's44', 's45', 's46', 's47', 's48'
    vLane = 1
    vKD = 2
    vVD = 6
    vKR = 10
    vVR = 14
    vPR = 18; vPW = 19; vTW = 20; vTR = 21
    vT = 22
    vQ = 32
    vKF = 64
    vS = 96
    vP = 132
    vVF = 152
    vPF = 168
    vAcc = 176
    vPart = 184
    vM = 194; vL = 195; vWS = 196; vWS4 = 197; vOut = 198; vLB = 199; vFlag = 200
    NV = 208
    C = 0.0625 * math.log2(math.e)

    def stamp(idx):
        if not stamps: return
        e(f's_memrealtime s[50:51]')
        e(f's_waitcnt lgkmcnt(0)')
        e(f'v_writelane_b32 v{NV-1}, s50, {idx}')

    if stamps: e('s_memrealtime s[56:57]')
    e(f's_cmp_ge_u32 s2, 256')
    e(f's_cbranch_scc1 L_end')
    e(f's_load_dwordx8 s[4:11], s[0:1], 0')
    e(f's_load_dwordx4 s[12:15], s[0:1], 32')
    if pf:
        e('s_getpc_b64 s[60:61]')
        e.label('L_pc')
        e('s_mov_b32 s62, L_end-L_pc')
        e('s_mov_b32 s63, 0x20000')
        e(f'v_lshlrev_b32 v{vT+9}, 4, v0')
        e('s_movk_i32 s58, 0x2000')
        e('s_movk_i32 s59, 0x4000')
        e(f'buffer_load_dwordx4 v[{vS}:{vS+3}], v{vT+9}, s[60:63], 0 offen {pfflags}')
        e(f'buffer_load_dwordx4 v[{vS+4}:{vS+7}], v{vT+9}, s[60:63], s58 offen {pfflags}')
        e(f'buffer_load_dwordx4 v[{vS+8}:{vS+11}], v{vT+9}, s[60:63], s59 offen {pfflags}')
    e(f'v_lshrrev_b32 v{vT}, 6, v0')
    e(f'v_and_b32 v{vLane}, 63, v0')
    e(f's_lshr_b32 {sHead}, s2, 4')
    e(f'v_readfirstlane_b32 {sWave}, v{vT}')
    e(f's_lshl_b32 {sHead}, {sHead}, 3')
    e(f's_and_b32 {sT0}, s2, 7')
    e(f's_add_u32 {sHead}, {sHead}, {sT0}')
    e(f's_lshr_b32 {sRole}, s2, 3')
    e(f's_and_b32 {sRole}, {sRole}, 1')
    e(f's_lshl_b32 {sLdsW}, {sWave}, 12')
    e(f's_lshl_b32 {sT0}, {sHead}, 20')
    e(f's_mul_i32 {sT1}, {sRole}, {TA*32768}')
    e(f's_add_u32 {sT0}, {sT0}, {sT1}')
    e(f's_add_u32 {sT0}, {sT0}, {sLdsW}')
    e(f'v_lshrrev_b32 v{vT}, 5, v{vLane}')
    e(f'v_and_b32 v{vT+1}, 31, v{vLane}')
    e(f's_and_b32 {sT1}, {sWave}, 1')
    e(f's_lshl_b32 {sT1}, {sT1}, 3')
    e(f'v_xor_b32 v{vT+2}, v{vT}, v{vT+1}')
    e(f'v_xor_b32 v{vT+3}, {sT1}, v{vT+2}')
    e(f'v_lshlrev_b32 v{vT+3}, 4, v{vT+3}')
    e(f'v_lshl_add_u32 v{vKD}, v{vT}, 9, v{vT+3}')
    for i in range(1, 4):
        e(f'v_xor_b32 v{vKD+i}, {2*i*16}, v{vKD}')
    if not kswz:
        for i in range(4): e(f'v_lshlrev_b32 v{vKD+i}, 4, v{vLane}')
    e(f's_waitcnt lgkmcnt(0)')
    if stamps:
        e(f'v_writelane_b32 v{NV-1}, s56, 7')
        stamp(8)
        e('s_getreg_b32 s56, hwreg(HW_REG_XCC_ID)')
        e(f'v_writelane_b32 v{NV-1}, s56, 9')
        e('s_getreg_b32 s56, hwreg(HW_REG_HW_ID)')
        e(f'v_writelane_b32 v{NV-1}, s56, 10')
    e(f's_add_u32 s16, s6, {sT0}')
    e(f's_addc_u32 s17, s7, 0')
    e(f's_mov_b32 s18, {max(TA,TB)*32768}')
    e(f's_mov_b32 s19, 0x20000')
    e(f's_add_u32 s20, s8, {sT0}')
    e(f's_addc_u32 s21, s9, 0')
    e(f's_mov_b32 s22, {max(TA,TB)*32768}')
    e(f's_mov_b32 s23, 0x20000')

    def dma(vm, n, T):
        isK = n < T
        t = n if isK else n - T
        srd = SK if isK else SV
        vo = vKD if isK else vVD
        e(f's_add_u32 m0, {sLdsW}, {SLOT_POS[n % 4]}')
        e(f's_mov_b32 {sOff}, {t*32768}')
        for i in range(4):
            e(f'buffer_load_dwordx4 v{vo+i}, {srd}, {sOff} offen offset:{i*1024} {(kf if kf is not None else nt) if isK else (vf if vf is not None else nt)} lds')
            vm.issue(('dma', n))

    vm0 = VM(e)
    if not qfirst: dma(vm0, 0, 99)
    e(f's_lshl_b32 {sT1}, {sWave}, 1')
    e(f'v_xor_b32 v{vT+3}, {sT1}, v{vT+2}')
    e(f'v_lshlrev_b32 v{vT+3}, 4, v{vT+3}')
    e(f'v_lshl_add_u32 v{vT+4}, v{vT}, 9, v{vT+3}')
    e(f's_lshl_b32 {sT0}, {sHead}, 13')
    e(f's_add_u32 s24, s4, {sT0}')
    e(f's_addc_u32 s25, s5, 0')
    e(f's_mov_b32 s26, 8192')
    e(f's_mov_b32 s27, 0x20000')
    e(f's_lshl_b32 {sT1}, {sWave}, 10')
    e(f's_add_u32 m0, {sT1}, {PBASE}')
    e(f's_nop 0')
    if not noq:
        e(f'buffer_load_dwordx4 v{vT+4}, {SQ_}, {sT1} offen {qnt} lds')
        vm0.issue(('dma', 0))
    if qfirst: dma(vm0, 0, 99)
    for n in (1, 2, 3): dma(vm0, n, 99)
    stamp(0)
    e(f's_add_u32 s28, s10, {sT0}')
    e(f's_addc_u32 s29, s11, 0')
    e(f's_mov_b32 s30, 8192')
    e(f's_mov_b32 s31, 0x20000')
    e(f's_lshl_b32 {sT0}, {sHead}, 15')
    e(f's_add_u32 {sT0}, {sT0}, {sLdsW}')
    e(f's_add_u32 s32, s14, {sT0}')
    e(f's_addc_u32 s33, s15, 0')
    e(f's_mov_b32 s34, 4096')
    e(f's_mov_b32 s35, 0x20000')
    e(f's_mov_b32 s36, s12')
    e(f's_mov_b32 s37, s13')
    e(f's_mov_b32 s38, 256')
    e(f's_mov_b32 s39, 0x20000')
    e(f's_mov_b32 {sC}, {f32(C)}')
    e(f's_lshr_b32 {sHalf}, {sWave}, 2')
    e(f'v_lshlrev_b32 v{vT+3}, 1, v{vT}')
    e(f'v_xor_b32 v{vT+3}, v{vT+3}, v{vT+1}')
    e(f'v_lshlrev_b32 v{vT+3}, 4, v{vT+3}')
    e(f'v_lshl_add_u32 v{vVD}, v{vT}, 9, v{vT+3}')
    for i in range(1, 4):
        e(f'v_xor_b32 v{vVD+i}, {4*i*16}, v{vVD}')
    if not vswz:
        for i in range(4): e(f'v_lshlrev_b32 v{vVD+i}, 4, v{vLane}')
    e(f'v_and_b32 v{vT+5}, 15, v{vLane}')
    e(f'v_lshrrev_b32 v{vT+6}, 4, v{vLane}')
    e(f'v_xor_b32 v{vT+7}, v{vT+5}, v{vT+6}')
    e(f'v_lshlrev_b32 v{vT+7}, 4, v{vT+7}')
    e(f'v_lshl_add_u32 v{vT+7}, v{vT+5}, 9, v{vT+7}')
    e(f's_and_b32 {sT0}, {sWave}, 3')
    e(f's_lshl_b32 {sT0}, {sT0}, 13')
    e(f's_lshl_b32 {sT1}, {sHalf}, 16')
    e(f's_add_u32 {sT0}, {sT0}, {sT1}')
    for jj in range(4):
        e(f'v_xor_b32 v{vVF+jj}, {jj*64}, v{vT+7}')
        e(f'v_add_u32 v{vKR+jj}, {sT0}, v{vVF+jj}')
        e(f'v_add_u32 v{vVF+jj}, {PBASE}, v{vVF+jj}')
    e(f'v_lshrrev_b32 v{vT+7}, 2, v{vLane}')
    e(f'v_and_b32 v{vT+8}, 7, v{vT+7}')
    e(f'v_lshlrev_b32 v{vT+8}, 1, v{vT+8}')
    e(f'v_bfe_u32 v{vT+9}, v{vLane}, 1, 1')
    e(f's_lshl_b32 {sT0}, {sWave}, 2')
    e(f'v_or_b32 v{vT+9}, {sT0}, v{vT+9}')
    e(f'v_xor_b32 v{vT+8}, v{vT+8}, v{vT+9}')
    e(f'v_lshlrev_b32 v{vT+8}, 4, v{vT+8}')
    e(f'v_lshl_add_u32 v{vT+8}, v{vT+7}, 9, v{vT+8}')
    e(f'v_and_b32 v{vT+9}, 1, v{vLane}')
    e(f'v_lshl_add_u32 v{vVR}, v{vT+9}, 3, v{vT+8}')
    e(f'v_xor_b32 v{vVR+1}, 32, v{vVR}')
    e(f'v_add_u32 v{vVR+2}, 0x10000, v{vVR}')
    e(f'v_add_u32 v{vVR+3}, 0x10000, v{vVR+1}')
    e(f'v_lshlrev_b32 v{vWS}, 4, v{vLane}')
    e(f'v_lshlrev_b32 v{vWS4}, 2, v{vLane}')
    e(f'v_add_u32 v{vPR}, {PBASE}, v{vWS}')
    e(f's_lshl_b32 {sT0}, {sHalf}, 11')
    e(f's_bfe_u32 {sT1}, {sWave}, 0x10001')
    e(f's_lshl_b32 {sT1}, {sT1}, 10')
    e(f's_add_u32 {sT0}, {sT0}, {sT1}')
    e(f's_and_b32 {sT1}, {sWave}, 1')
    e(f's_lshl_b32 {sT1}, {sT1}, 3')
    e(f's_add_u32 {sT0}, {sT0}, {sT1}')
    e(f'v_add_u32 v{vPW}, {sT0}, v{vPR}')
    e(f'v_lshlrev_b32 v{vTR}, 5, v{vT+5}')
    e(f'v_add_u32 v{vTR}, {TAB_M}, v{vTR}')
    e(f's_lshl_b32 {sT0}, {sWave}, 2')
    e(f'v_add_u32 v{vTW}, {sT0}, v{vTR}')
    e(f'v_lshlrev_b32 v{vOut}, 9, v{vT+5}')
    e(f'v_lshl_add_u32 v{vOut}, v{vT+6}, 3, v{vOut}')
    e(f's_lshl_b32 {sT0}, {sWave}, 6')
    e(f'v_add_u32 v{vOut}, {sT0}, v{vOut}')
    e(f's_and_b32 {sT0}, {sHead}, 63')
    e(f's_lshl_b32 {sT0}, {sT0}, 2')
    e(f'v_mov_b32 v{vFlag}, {sT0}')
    e(f's_lshr_b32 {sT0}, {sHead}, 6')
    e(f's_lshl_b32 s49, 1, {sT0}')
    for r in range(8): e(f'v_mov_b32 v{vAcc+r}, 0')
    e(f's_cmp_eq_u32 {sRole}, 1')
    e(f's_cbranch_scc1 L_roleB')

    def body(role):
        T = TB if role else TA
        R = 'B' if role else 'A'
        vm = VM(e); vm.ops = list(vm0.ops)
        NT = (T + 1) // 2
        if T % 2:
            for r in range(4): e(f'v_mov_b32 v{vS+4*(NT-1)+r}, 0xff800000')
        if role == 0 and not poison and not noflag: vm.issue('poison'); e('buffer_load_dword v%d, v%d, %s, 0 offen nt' % (vPart, vWS4, SQ_))
        if role == 0 and poison:
            for r in range(4): e(f'v_mov_b32 v{vPart+r}, -1')
            e(f'buffer_store_dwordx4 v[{vPart}:{vPart+3}], v{vWS}, {SW}, 0 offen {stf}'); vm.issue('poison')
            e(f'buffer_store_dwordx4 v[{vPart}:{vPart+3}], v{vWS}, {SW}, 0 offen offset:1024 {stf}'); vm.issue('poison')
            e(f'buffer_store_dword v{vPart}, v{vWS4}, {SW}, 0 offen offset:2048 {stf}'); vm.issue('poison')
        issued = 4
        for n in range(T):
            e.c(f'---- {R} K step {n}')
            if role == 0 and n == kflag_step and not noflag:
                vm.wait('poison')
                if vm.after(('dma', n)) < vm.after('poison'): vm.wait(('dma', n))
            else:
                vm.wait(('dma', n))
            e('s_barrier')
            if n == 0: stamp(1)
            if stamps > 1: stamp(16+n)
            if role == 0 and n == kflag_step and not noflag:
                e(f's_cmp_lg_u32 {sWave}, 0')
                e(f's_cbranch_scc1 L_noflag_{R}')
                e(f'v_mov_b32 v{vT}, s49')
                e(f's_mov_b64 exec, 1')
                e(f'buffer_atomic_or v{vT}, v{vFlag}, {SD}, 0 offen sc1')
                e(f's_mov_b64 exec, -1')
                e.label(f'L_noflag_{R}')
            if role == 1 and n == bflag_step and not noflag:
                e(f's_cmp_lg_u32 {sWave}, 0')
                e(f's_cbranch_scc1 L_nopoll_{R}')
                e(f'buffer_load_dword v{vLB}, v{vFlag}, {SD}, 0 offen sc1')
                e.label(f'L_nopoll_{R}')
                vm.issue('flagld_marker'); vm.ops.pop()
                flag_pos = len(vm.ops)
            if role == 1 and n == bflag_step + 3 and not noflag:
                e(f's_cmp_lg_u32 {sWave}, 0')
                e(f's_cbranch_scc1 L_flagok_{R}')
                e(f's_waitcnt vmcnt({len(vm.ops) - flag_pos})')
                e.label(f'L_flagchk_{R}')
                e(f'v_readfirstlane_b32 {sT0}, v{vLB}')
                e(f's_nop 3')
                e(f's_and_b32 {sT0}, {sT0}, s49')
                e(f's_cbranch_scc1 L_flagok_{R}')
                e(f's_sleep 8')
                e(f'buffer_load_dword v{vLB}, v{vFlag}, {SD}, 0 offen sc1')
                e(f's_waitcnt vmcnt(0)')
                e(f's_branch L_flagchk_{R}')
                e.label(f'L_flagok_{R}')
            if n >= 1 and issued < 2 * T:
                dma(vm, issued, T); issued += 1
            if n == 0:
                for j in range(8):
                    e(f'ds_read_b128 v[{vQ+4*j}:{vQ+4*j+3}], v{vVF+(j&3)} offset:{(j>>2)*256}')
            if strip & 1:
                if n == 0: e('s_waitcnt lgkmcnt(0)')
                continue
            e(f's_cmp_lg_u32 {sHalf}, {n&1 if not nocomp else 5}')
            e(f's_cbranch_scc1 L_kskip_{R}{n}')
            so = ((n >> 1) & 1) * 32768
            for j in range(8):
                e(f'ds_read_b128 v[{vKF+4*j}:{vKF+4*j+3}], v{vKR+(j&3)} offset:{so+(j>>2)*256}')
            d = vS + 4 * (n >> 1)
            for j in range(8):
                e(f's_waitcnt lgkmcnt({7-j})')
                cin = '0' if j == 0 else f'v[{d}:{d+3}]'
                e(f'v_mfma_f32_16x16x32_bf16 v[{d}:{d+3}], v[{vKF+4*j}:{vKF+4*j+3}], v[{vQ+4*j}:{vQ+4*j+3}], {cin}')
            e.label(f'L_kskip_{R}{n}')
            if n == 0: e('s_waitcnt lgkmcnt(0)')
        e.c(f'---- {R} softmax')
        stamp(2)
        e('s_nop 7')
        e('s_nop 1')
        NS_ = 4 * NT
        if strip & 4: NS_ = 4; NT = 1
        e(f'v_max3_f32 v{vM}, v{vS}, v{vS+1}, v{vS+2}')
        i = 3
        while i + 1 < NS_:
            e(f'v_max3_f32 v{vM}, v{vM}, v{vS+i}, v{vS+i+1}'); i += 2
        if i < NS_: e(f'v_max_f32 v{vM}, v{vM}, v{vS+i}')
        def xg(reg, op):
            e(f'v_mov_b32 v{vT}, v{reg}')
            e('s_nop 1')
            e(f'v_permlane32_swap_b32 v{reg}, v{vT}')
            e(f'{op} v{reg}, v{reg}, v{vT}')
            e(f'v_mov_b32 v{vT}, v{reg}')
            e('s_nop 1')
            e(f'v_permlane16_swap_b32 v{reg}, v{vT}')
            e(f'{op} v{reg}, v{reg}, v{vT}')
        xg(vM, 'v_max_f32')
        e(f'ds_write_b32 v{vTW}, v{vM}')
        e('s_waitcnt lgkmcnt(0)')
        e('s_barrier')
        e(f'ds_read_b128 v[{vKF}:{vKF+3}], v{vTR}')
        e(f'ds_read_b128 v[{vKF+4}:{vKF+7}], v{vTR} offset:16')
        if issued < 2 * T:
            dma(vm, issued, T); issued += 1
        e('s_waitcnt lgkmcnt(0)')
        e(f'v_max3_f32 v{vM}, v{vKF}, v{vKF+1}, v{vKF+2}')
        e(f'v_max3_f32 v{vT}, v{vKF+3}, v{vKF+4}, v{vKF+5}')
        e(f'v_max3_f32 v{vM}, v{vM}, v{vKF+6}, v{vKF+7}')
        e(f'v_max_f32 v{vM}, v{vM}, v{vT}')
        e(f'v_mul_f32 v{vM}, {sC}, v{vM}')
        for i in range(NS_):
            e(f'v_fma_f32 v{vS+i}, v{vS+i}, {sC}, -v{vM}')
        for i in range(NS_):
            e(f'v_exp_f32 v{vS+i}, v{vS+i}')
        e('s_nop 0')
        for i in range(NT):
            e(f'v_cvt_pk_bf16_f32 v{vP+2*i}, v{vS+4*i}, v{vS+4*i+1}')
            e(f'v_cvt_pk_bf16_f32 v{vP+2*i+1}, v{vS+4*i+2}, v{vS+4*i+3}')
            if i < NPE // 2:
                e(f'ds_write_b64 v{vPW}, v[{vP+2*i}:{vP+2*i+1}] offset:{i*4096}')
        e(f'v_add_f32 v{vL}, v{vS}, v{vS+1}')
        e(f'v_add_f32 v{vT+1}, v{vS+2}, v{vS+3}')
        for i in range(4, NS_, 2):
            e(f'v_add_f32 v{vL}, v{vL}, v{vS+i}')
            e(f'v_add_f32 v{vT+1}, v{vT+1}, v{vS+i+1}')
        e(f'v_add_f32 v{vL}, v{vL}, v{vT+1}')
        xg(vL, 'v_add_f32')
        e(f'ds_write_b32 v{vTW}, v{vL} offset:512')
        stamp(3)
        for t in range(T):
            n = T + t
            e.c(f'---- {R} V step {t}')
            if role == 1 and t == T - partstep and not noend:
                e(f'buffer_load_dwordx4 v[{vPart}:{vPart+3}], v{vWS}, {SW}, 0 offen {ldf}'); vm.issue('part')
                e(f'buffer_load_dwordx4 v[{vPart+4}:{vPart+7}], v{vWS}, {SW}, 0 offen offset:1024 {ldf}'); vm.issue('part')
                e(f'buffer_load_dword v{vPart+8}, v{vWS4}, {SW}, 0 offen offset:2048 {ldf}'); vm.issue('part')
            vm.wait(('dma', n), ' lgkmcnt(0)')
            e('s_barrier')
            if t == T - 1: stamp(4)
            if stamps > 1: stamp(40+t)
            if t >= 1 and issued < 2 * T:
                dma(vm, issued, T); issued += 1
            if strip & 2: continue
            pe = (t % NPE) * 2048
            e(f'ds_read_b128 v[{vPF}:{vPF+3}], v{vPR} offset:{pe}')
            pos = SLOT_POS[n % 4]
            pair = pos >> 16; so = pos & 0xffff
            def trd(u, dt):
                for hh in range(2):
                    r = vVF + 8 * u + 4 * dt + 2 * hh
                    e(f'ds_read_b64_tr_b16 v[{r}:{r+1}], v{vVR+2*pair+dt} offset:{so+(2*u+hh)*8192}')
            trd(0, 0); trd(0, 1)
            e(f'ds_read_b128 v[{vPF+4}:{vPF+7}], v{vPR} offset:{pe+1024}')
            trd(1, 0); trd(1, 1)
            late = []
            for i in range(NPE // 2, NT):
                if t == 2 * (i - NPE // 2) + 2: late.append(i)
            nl = 0
            if t == 1:
                e(f'ds_read_b128 v[{vKF}:{vKF+3}], v{vTR} offset:512')
                e(f'ds_read_b128 v[{vKF+4}:{vKF+7}], v{vTR} offset:528'); nl += 2
            for i in late:
                e(f'ds_write_b64 v{vPW}, v[{vP+2*i}:{vP+2*i+1}] offset:{(i-NPE//2)*4096}'); nl += 1
            cnt = [7, 5, 2, 0]
            k = 0
            for u in range(2):
                for dt in range(2):
                    e(f's_waitcnt lgkmcnt({cnt[k]+nl})'); k += 1
                    a = vVF + 8 * u + 4 * dt
                    e(f'v_mfma_f32_16x16x32_bf16 v[{vAcc+4*dt}:{vAcc+4*dt+3}], v[{a}:{a+3}], v[{vPF+4*u}:{vPF+4*u+3}], v[{vAcc+4*dt}:{vAcc+4*dt+3}]')
            if t == 1:
                e('s_waitcnt lgkmcnt(0)')
                e(f'v_add_f32 v{vKF}, v{vKF}, v{vKF+1}')
                e(f'v_add_f32 v{vKF+2}, v{vKF+2}, v{vKF+3}')
                e(f'v_add_f32 v{vKF+4}, v{vKF+4}, v{vKF+5}')
                e(f'v_add_f32 v{vKF+6}, v{vKF+6}, v{vKF+7}')
                e(f'v_add_f32 v{vKF}, v{vKF}, v{vKF+2}')
                e(f'v_add_f32 v{vKF+4}, v{vKF+4}, v{vKF+6}')
                e(f'v_add_f32 v{vL}, v{vKF}, v{vKF+4}')
                e(f'v_log_f32 v{vT}, v{vL}')
                e(f'v_rcp_f32 v{vL}, v{vL}')
                e('s_nop 0')
                e(f'v_add_f32 v{vM}, v{vM}, v{vT}')
        e.c(f'---- {R} epilogue')
        if noend:
            if role == 1: stamp(5)
        elif role == 0:
            e('s_nop 7')
            for r in range(8):
                e(f'v_mul_f32 v{vPart+r}, v{vAcc+r}, v{vL}')
            for r in range(8):
                e(f'v_min_u32 v{vPart+r}, -2, v{vPart+r}')
            e(f'v_min_u32 v{vPart+8}, -2, v{vM}')
            e(f'buffer_store_dwordx4 v[{vPart}:{vPart+3}], v{vWS}, {SW}, 0 offen {stf}')
            e(f'buffer_store_dwordx4 v[{vPart+4}:{vPart+7}], v{vWS}, {SW}, 0 offen offset:1024 {stf}')
            e(f'buffer_store_dword v{vPart+8}, v{vWS4}, {SW}, 0 offen offset:2048 {stf}')
        else:
            e.label('L_chk')
            e('s_waitcnt vmcnt(0)')
            e(f'v_max3_u32 v{vT}, v{vPart}, v{vPart+1}, v{vPart+2}')
            e(f'v_max3_u32 v{vT+1}, v{vPart+3}, v{vPart+4}, v{vPart+5}')
            e(f'v_max3_u32 v{vT+2}, v{vPart+6}, v{vPart+7}, v{vPart+8}')
            e(f'v_max3_u32 v{vT}, v{vT}, v{vT+1}, v{vT+2}')
            e(f'v_cmp_eq_u32 vcc, -1, v{vT}')
            e(f's_cbranch_vccz L_got')
            e(f's_sleep 2')
            e(f'buffer_load_dwordx4 v[{vPart}:{vPart+3}], v{vWS}, {SW}, 0 offen {ldf}')
            e(f'buffer_load_dwordx4 v[{vPart+4}:{vPart+7}], v{vWS}, {SW}, 0 offen offset:1024 {ldf}')
            e(f'buffer_load_dword v{vPart+8}, v{vWS4}, {SW}, 0 offen offset:2048 {ldf}')
            e(f's_branch L_chk')
            e.label('L_got')
            stamp(5)
            e(f'v_sub_f32 v{vT}, v{vM}, v{vPart+8}')
            e(f'v_exp_f32 v{vT}, v{vT}')
            e('s_nop 0')
            e(f'v_add_f32 v{vT}, 1.0, v{vT}')
            e(f'v_rcp_f32 v{vT}, v{vT}')
            e('s_nop 0')
            e(f'v_sub_f32 v{vT+1}, 1.0, v{vT}')
            e(f'v_mul_f32 v{vT+1}, v{vT+1}, v{vL}')
            for r in range(8):
                e(f'v_mul_f32 v{vPart+r}, v{vPart+r}, v{vT}')
            for r in range(8):
                e(f'v_fmac_f32 v{vPart+r}, v{vAcc+r}, v{vT+1}')
            for r in range(4):
                e(f'v_cvt_pk_bf16_f32 v{vT+2+r}, v{vPart+2*r}, v{vPart+2*r+1}')
            if not noout:
                e(f'buffer_store_dwordx2 v[{vT+2}:{vT+3}], v{vOut}, {SO}, 0 offen {outf}')
                e(f'buffer_store_dwordx2 v[{vT+4}:{vT+5}], v{vOut}, {SO}, 0 offen offset:32 {outf}')
        if stamps:
            stamp(6)
            e(f's_lshl_b32 {sT0}, s2, 3')
            e(f's_add_u32 {sT0}, {sT0}, {sWave}')
            e(f's_lshl_b32 {sT0}, {sT0}, 8')
            e(f's_add_u32 {sT0}, {sT0}, 0x10000000')
            e(f's_add_u32 s52, s14, {sT0}')
            e(f's_addc_u32 s53, s15, 0')
            e(f's_mov_b32 s54, 256')
            e(f's_mov_b32 s55, 0x20000')
            e(f'buffer_store_dword v{NV-1}, v{vWS4}, s[52:55], 0 offen')
        e('s_endpgm')

    body(0)
    e.label('L_roleB')
    body(1)
    e.label('L_end')
    e('s_endpgm')
    txt = e.text().replace('L_', f'L{name[:6]}{abs(hash(name))%9973}_') if name != NAME else e.text()
    return txt, NV

HEADER = '''; Kernarg layout for this problem (48 bytes, ptrs only, base s[0:1]):
'''
def wrap(kernels, single=True):
    s = HEADER
    if single:
        s += f'; @launch grid=(256,1,1) block=(512,1,1) lds={LDS_BYTES}\n'
    else:
        for (n, t, nv) in kernels:
            s += f'; @launch kernel={n} grid=(256,1,1) block=(512,1,1) lds={LDS_BYTES}\n'
    s += '.amdgcn_target "amdgcn-amd-amdhsa--gfx950"\n.text\n'
    for (n, t, nv) in kernels:
        s += f'.globl {n}\n.p2align 8\n.type {n},@function\n{n}:\n{t}'
    s += '.section .rodata,"a"\n'
    for (n, t, nv) in kernels:
        s += f'''.p2align 6
.amdhsa_kernel {n}
  .amdhsa_next_free_vgpr {nv}
  .amdhsa_next_free_sgpr 64
  .amdhsa_accum_offset {(nv+3)//4*4}
  .amdhsa_group_segment_fixed_size 0
  .amdhsa_kernarg_size 48
  .amdhsa_user_sgpr_count 2
  .amdhsa_user_sgpr_kernarg_segment_ptr 1
  .amdhsa_system_sgpr_workgroup_id_x 1
.end_amdhsa_kernel
'''
    return s

if __name__ == '__main__':
    t, nv = gen()
    open('standalone__softmax_full_bidir__sampling.s', 'w').write(wrap([(NAME, t, nv)]))
    print('written; lds', LDS_BYTES)
```

```python
import sys
sys.path.insert(0,'gen')
import gen_attn as g
def desc(n,nv,sg=64):
    return f'''.p2align 6
.amdhsa_kernel {n}
  .amdhsa_next_free_vgpr {nv}
  .amdhsa_next_free_sgpr {sg}
  .amdhsa_accum_offset {(nv+3)//4*4}
  .amdhsa_group_segment_fixed_size 0
  .amdhsa_kernarg_size 48
  .amdhsa_user_sgpr_count 2
  .amdhsa_user_sgpr_kernarg_segment_ptr 1
  .amdhsa_system_sgpr_workgroup_id_x 1
.end_amdhsa_kernel
'''
EMPTY='    s_endpgm\n'
def touch(stride_log2):
    n=(1<<27)>>stride_log2
    per=max(1,n//2048)
    s=f'''    s_cmp_ge_u32 s2, 256
    s_cbranch_scc1 L_tend
    s_load_dwordx4 s[4:7], s[0:1], 8
    s_lshr_b32 s3, s2, 3
    s_lshl_b32 s3, s3, 6
    v_add_u32 v1, s3, v0
    v_lshlrev_b32 v1, {stride_log2}, v1
    s_waitcnt lgkmcnt(0)
    s_mov_b32 s8, s4
    s_mov_b32 s9, s5
    s_mov_b32 s10, 0x8000000
    s_mov_b32 s11, 0x20000
    s_mov_b32 s12, s6
    s_mov_b32 s13, s7
    s_mov_b32 s14, 0x8000000
    s_mov_b32 s15, 0x20000
'''
    for i in range(per):
        s+=f'    s_mov_b32 s16, {(i*2048)<<stride_log2}\n    buffer_load_dword v2, v1, s[8:11], s16 offen nt\n    buffer_load_dword v3, v1, s[12:15], s16 offen nt\n'
    s+='    s_waitcnt vmcnt(0)\nL_tend:\n    s_endpgm\n'
    return s
def mk(path, seq, **kw):
    t,nv=g.gen(name='main_kernel',**kw)
    ks={'main_kernel':(t,nv,512,g.LDS_BYTES),'empty_kernel':(EMPTY,8,64,0),'t21_kernel':(touch(21),8,64,0),'t16_kernel':(touch(16).replace('L_tend','L_tend16'),8,64,0),'t12_kernel':(touch(12).replace('L_tend','L_tend12'),8,64,0)}
    s=g.HEADER
    for n in seq: s+=f'; @launch kernel={n} grid=(256,1,1) block=({ks[n][2]},1,1) lds={ks[n][3]}\n'
    s+='.amdgcn_target "amdgcn-amd-amdhsa--gfx950"\n.text\n'
    used=list(dict.fromkeys(seq))
    for n in used: s+=f'.globl {n}\n.p2align 8\n.type {n},@function\n{n}:\n{ks[n][0]}'
    s+='.section .rodata,"a"\n'
    for n in used: s+=desc(n,ks[n][1])
    open(path,'w').write(s)
if __name__=='__main__':
    kw=dict(TA=15,qnt='nt')
    mk('L1.s',['main_kernel'],**kw)
    mk('L2.s',['main_kernel','main_kernel'],**kw)
    mk('L3.s',['empty_kernel','main_kernel'],**kw)
    mk('L4.s',['t21_kernel','main_kernel'],**kw)
    mk('L5.s',['t16_kernel','main_kernel'],**kw)
    mk('L6.s',['main_kernel','empty_kernel','empty_kernel','empty_kernel','empty_kernel'],**kw)
```

```python
import sys
sys.path.insert(0,'gen')
import gen_attn as g
from mklist import desc, EMPTY
def spin(mult, idx_a=7, idx_b=6):
    s=f'''    s_cmp_ge_u32 s2, 1
    s_cbranch_scc1 L_send
    s_load_dwordx2 s[4:5], s[0:1], 40
    v_lshlrev_b32 v1, 11, v0
    s_waitcnt lgkmcnt(0)
    s_add_u32 s8, s4, 0x10000000
    s_addc_u32 s9, s5, 0
    s_mov_b32 s10, 0x80000
    s_mov_b32 s11, 0x20000
'''
    for i in range(4):
        s+=f'    s_mov_b32 s16, {i*64*2048}\n    buffer_load_dword v{2+i}, v1, s[8:11], s16 offen offset:{idx_a*4}\n    buffer_load_dword v{6+i}, v1, s[8:11], s16 offen offset:{idx_b*4}\n'
    s+='''    s_waitcnt vmcnt(0)
    v_min_u32 v2, v2, v3
    v_min_u32 v4, v4, v5
    v_min_u32 v2, v2, v4
    v_max_u32 v6, v6, v7
    v_max_u32 v8, v8, v9
    v_max_u32 v6, v6, v8
    s_mov_b32 s20, -1
    s_mov_b32 s21, 0
    s_nop 1
'''
    for l in range(64):
        s+=f'    v_readlane_b32 s22, v2, {l}\n    v_readlane_b32 s23, v6, {l}\n    s_nop 1\n    s_min_u32 s20, s20, s22\n    s_max_u32 s21, s21, s23\n'
    s+=f'''    s_sub_u32 s21, s21, s20
    s_min_u32 s21, s21, 20000
    s_mul_i32 s21, s21, {mult}
    s_memrealtime s[24:25]
    s_waitcnt lgkmcnt(0)
L_spin:
    s_memrealtime s[26:27]
    s_waitcnt lgkmcnt(0)
    s_sub_u32 s28, s26, s24
    s_cmp_lt_u32 s28, s21
    s_cbranch_scc1 L_spin
L_send:
    s_endpgm
'''
    return s
def mk(path, mult, a=7, b=6, **kw):
    t,nv=g.gen(name='main_kernel',stamps=1,**kw)
    ks={'main_kernel':(t,nv,512,g.LDS_BYTES,256),'spin_kernel':(spin(mult,a,b),16,64,0,1)}
    seq=['main_kernel','spin_kernel']
    s=g.HEADER
    for n in seq: s+=f'; @launch kernel={n} grid=({ks[n][4]},1,1) block=({ks[n][2]},1,1) lds={ks[n][3]}\n'
    s+='.amdgcn_target "amdgcn-amd-amdhsa--gfx950"\n.text\n'
    for n in seq: s+=f'.globl {n}\n.p2align 8\n.type {n},@function\n{n}:\n{ks[n][0]}'
    s+='.section .rodata,"a"\n'
    for n in seq: s+=desc(n,ks[n][1])
    open(path,'w').write(s)
if __name__=='__main__':
    kw=dict(TA=15,qnt='nt')
    mk('C0.s',0,**kw)
    mk('C1.s',1,**kw)
    mk('C2.s',2,**kw)
    mk('C3.s',4,7,1,**kw)
    mk('C4.s',4,7,7,**kw)
    mk('C5.s',2,7,2,**kw)
```

```python
import sys, math, struct, zlib

NAME = 'standalone__softmax_full_bidir__sampling_kernel'
def f32(x): return '0x%08x' % struct.unpack('<I', struct.pack('<f', x))[0]

class Emit:
    def __init__(self): self.l = []
    def __call__(self, s): self.l.append('    ' + s)
    def label(self, s): self.l.append(s + ':')
    def c(self, s): self.l.append('    ; ' + s)
    def text(self): return '\n'.join(self.l) + '\n'

class VM:
    def __init__(self, e): self.e = e; self.ops = []
    def issue(self, tag): self.ops.append(tag)
    def after(self, tag):
        idx = max(i for i, t in enumerate(self.ops) if t == tag)
        return len(self.ops) - 1 - idx
    def wait(self, *tags, extra=''):
        n = min(self.after(t) for t in tags)
        assert n <= 63
        self.e(f's_waitcnt vmcnt({n}){extra}')

SLOT_POS = [0, 65536, 32768, 98304]
PBASE = 131072
NPE = 14
TAB_M = PBASE + NPE * 2048
TAB_L = TAB_M + 512
LDS_BYTES = TAB_L + 512

def gen(TA=15, name=NAME, stamps=0, kf='nt', vf='nt', qf='nt', hand='toggle', probar=True, early=2,
        stf='sc1', ldf='sc1', outf='', partstep=1, noend=False, pairbit=3, spread=True, pf=0, parts='oSLOF', touch='', LA=3, roleinv=0, rolex=True, LA2=None, LAsw=None, frac=0):
    TB = 32 - TA
    TAe = TA + (1 if frac else 0)
    if LA2 is None: LA2 = LA
    e = Emit()
    SK, SV, SQ_, SO, SW, SD = 's[16:19]', 's[20:23]', 's[24:27]', 's[28:31]', 's[32:35]', 's[36:39]'
    sWave, sHead, sRole, sLdsW, sOff, sT0, sT1, sC, sHalf, sBit, sSel, sCnt = ('s40', 's41', 's42', 's43', 's44', 's45',
                                                                     's46', 's47', 's48', 's49', 's58', 's59')
    vLane = 1
    vKD = 2; vVD = 6; vKR = 10; vVR = 14
    vPR = 18; vPW = 19; vTW = 20; vTR = 21
    vT = 22
    vQ = 32; vKF = 64
    vS = 96
    vP = 136
    vVF = 156
    vPF = 172
    vAcc = 180
    vPart = 188
    vOld = 200
    vM = 210; vL = 211; vWS = 212; vWS4 = 213; vOut = 214; vLB = 215; vFlag = 216
    NV = 224
    C = 0.0625 * math.log2(math.e)
    PX = (lambda r: r + r // 3) if hand == 'tag' else (lambda r: r)

    def stamp(idx):
        if not stamps: return
        e(f's_memrealtime s[50:51]')
        e(f's_waitcnt lgkmcnt(0)')
        e(f'v_writelane_b32 v{NV-1}, s50, {idx}')

    if stamps: e('s_memrealtime s[56:57]')
    e(f's_load_dwordx8 s[4:11], s[0:1], 0')
    e(f's_load_dwordx4 s[12:15], s[0:1], 32')
    e(f's_cmp_ge_u32 s2, 256')
    e(f's_cbranch_scc1 L_end')
    e(f'v_lshrrev_b32 v{vT}, 6, v0')
    e(f'v_and_b32 v{vLane}, 63, v0')
    e(f's_lshr_b32 {sHead}, s2, {pairbit+1}')
    e(f'v_readfirstlane_b32 {sWave}, v{vT}')
    e(f's_lshl_b32 {sHead}, {sHead}, {pairbit}')
    e(f's_and_b32 {sT0}, s2, {(1<<pairbit)-1}')
    e(f's_add_u32 {sHead}, {sHead}, {sT0}')
    if pairbit == 3 or not rolex:
        e(f's_bfe_u32 {sRole}, s2, {0x10000+pairbit}')
    else:
        e(f's_lshr_b32 {sRole}, s2, {pairbit}')
        e(f's_lshr_b32 {sT0}, s2, 3')
        e(f's_xor_b32 {sRole}, {sRole}, {sT0}')
        e(f's_and_b32 {sRole}, {sRole}, 1')
    if roleinv: e(f's_xor_b32 {sRole}, {sRole}, 1')
    e(f's_lshl_b32 {sLdsW}, {sWave}, 12')
    e(f's_lshl_b32 {sT0}, {sHead}, 20')
    e(f's_mul_i32 {sT1}, {sRole}, {TA*32768}')
    e(f's_add_u32 {sT0}, {sT0}, {sT1}')
    e(f's_add_u32 {sT0}, {sT0}, {sLdsW}')
    e(f'v_lshrrev_b32 v{vT}, 5, v{vLane}')
    e(f'v_and_b32 v{vT+1}, 31, v{vLane}')
    e(f's_and_b32 {sT1}, {sWave}, 1')
    e(f's_lshl_b32 {sT1}, {sT1}, 3')
    e(f'v_xor_b32 v{vT+2}, v{vT}, v{vT+1}')
    e(f'v_xor_b32 v{vT+3}, {sT1}, v{vT+2}')
    e(f'v_lshlrev_b32 v{vT+3}, 4, v{vT+3}')
    e(f'v_lshl_add_u32 v{vKD}, v{vT}, 9, v{vT+3}')
    for i in range(1, 4):
        e(f'v_xor_b32 v{vKD+i}, {2*i*16}, v{vKD}')
    e(f's_lshl_b32 {sT1}, {sWave}, 1')
    e(f'v_xor_b32 v{vT+3}, {sT1}, v{vT+2}')
    e(f'v_lshlrev_b32 v{vT+3}, 4, v{vT+3}')
    e(f'v_lshl_add_u32 v{vT+4}, v{vT}, 9, v{vT+3}')
    e(f's_mov_b32 s18, 0x100000')
    e(f's_mov_b32 s19, 0x20000')
    e(f's_mov_b32 s22, 0x100000')
    e(f's_mov_b32 s23, 0x20000')
    e(f's_mov_b32 s26, 8192')
    e(f's_mov_b32 s27, 0x20000')
    e(f's_lshl_b32 s52, {sHead}, 13')
    e(f's_lshl_b32 s53, {sWave}, 10')
    e(f's_waitcnt lgkmcnt(0)')
    if stamps:
        e(f'v_writelane_b32 v{NV-1}, s56, 7')
        stamp(8)
        e('s_getreg_b32 s56, hwreg(HW_REG_XCC_ID)')
        e(f'v_writelane_b32 v{NV-1}, s56, 9')
        e('s_getreg_b32 s56, hwreg(HW_REG_HW_ID)')
        e(f'v_writelane_b32 v{NV-1}, s56, 10')
    e(f's_add_u32 s16, s6, {sT0}')
    e(f's_addc_u32 s17, s7, 0')

    def dma(vm, n, T, shared=-1, perm=lambda t: t):
        isK = n < T
        t = n if isK else n - T
        srd = SK if isK else SV
        vo = vKD if isK else vVD
        e(f's_add_u32 m0, {sLdsW}, {SLOT_POS[n % 4]}')
        so_ = sOff
        if t == shared: so_ = 's60'; e('s_nop 0')
        else: e(f's_mov_b32 {sOff}, {perm(t)*32768}')
        for i in range(4):
            e(f'buffer_load_dwordx4 v{vo+i}, {srd}, {so_} offen offset:{i*1024} {kf if isK else vf} lds')
            vm.issue(('dma', n))

    def ws_loads(dst, vm=None, tag=None):
        if hand == 'tag':
            for i in range(3):
                e(f'buffer_load_dwordx4 v[{dst+4*i}:{dst+4*i+3}], v{vWS}, {SW}, 0 offen offset:{i*1024} {ldf}')
                if vm: vm.issue(tag)
            return
        e(f'buffer_load_dwordx4 v[{dst}:{dst+3}], v{vWS}, {SW}, 0 offen {ldf}')
        e(f'buffer_load_dwordx4 v[{dst+4}:{dst+7}], v{vWS}, {SW}, 0 offen offset:1024 {ldf}')
        e(f'buffer_load_dword v{dst+8}, v{vWS4}, {SW}, 0 offen offset:2048 {ldf}')
        if vm:
            for _ in range(3): vm.issue(tag)
    def ws_stores(src, vm=None, tag=None, same=False):
        if hand == 'tag':
            for i in range(3):
                e(f'buffer_store_dwordx4 v[{src+4*i}:{src+4*i+3}], v{vWS}, {SW}, 0 offen offset:{i*1024} {stf}')
            return
        e(f'buffer_store_dwordx4 v[{src}:{src+3}], v{vWS}, {SW}, 0 offen {stf}')
        o = 0 if same else 4
        e(f'buffer_store_dwordx4 v[{src+o}:{src+o+3}], v{vWS}, {SW}, 0 offen offset:1024 {stf}')
        e(f'buffer_store_dword v{src+2*o}, v{vWS4}, {SW}, 0 offen offset:2048 {stf}')
        if vm:
            for _ in range(3): vm.issue(tag)

    vm0 = VM(e)
    dma(vm0, 0, 99)
    e(f's_add_u32 s24, s4, s52')
    e(f's_addc_u32 s25, s5, 0')
    e(f's_add_u32 m0, s53, {PBASE}')
    e(f's_add_u32 s20, s8, {sT0}')
    e(f's_addc_u32 s21, s9, 0')
    e(f'buffer_load_dwordx4 v{vT+4}, {SQ_}, s53 offen {qf} lds')
    vm0.issue(('dma', 0))
    def srds():
        e(f's_add_u32 s28, s10, s52')
        e(f's_addc_u32 s29, s11, 0')
        e(f's_mov_b32 s30, 8192')
        e(f's_mov_b32 s31, 0x20000')
        e(f's_lshl_b32 {sT0}, {sHead}, 15')
        e(f's_add_u32 {sT0}, {sT0}, {sLdsW}')
        e(f's_add_u32 s32, s14, {sT0}')
        e(f's_addc_u32 s33, s15, 0')
        e(f's_mov_b32 s34, 4096')
        e(f's_mov_b32 s35, 0x20000')
        e(f's_mov_b32 s36, s12')
        e(f's_mov_b32 s37, s13')
        e(f's_mov_b32 s38, 256')
        e(f's_mov_b32 s39, 0x20000')
        e(f'v_lshlrev_b32 v{vWS}, 4, v{vLane}')
        e(f'v_lshlrev_b32 v{vWS4}, 2, v{vLane}')
    if early < 0 or touch:
        srds()
        if early < 0 and hand == 'toggle' and 'o' in parts and not noend:
            ws_loads(vOld, vm0, 'old')
        e(f'v_mov_b32 v{vT+9}, 0')
        if early < 0 and hand == 'tag' and not noend:
            e(f'buffer_load_dword v{vOld}, v{vT+9}, {SW}, 0 offen offset:12 {ldf}'); vm0.issue('old')
        for ch, srd in (('w', SW), ('o', SO), ('v', SV), ('d', SD)):
            if ch in touch:
                e(f'buffer_load_dword v{vPart}, v{vT+9}, {srd}, 0 offen {"sc1" if ch in "wd" else "nt"}'); vm0.issue('touch')
    for n in range(1, LA+1):
        if probar: e('s_barrier')
        dma(vm0, n, 99)
    stamp(0)
    if not (early < 0 or touch): srds()
    e(f's_mov_b32 {sC}, {f32(C)}')
    e(f's_lshr_b32 {sHalf}, {sWave}, 2')
    e(f'v_lshlrev_b32 v{vT+3}, 1, v{vT}')
    e(f'v_xor_b32 v{vT+3}, v{vT+3}, v{vT+1}')
    e(f'v_lshlrev_b32 v{vT+3}, 4, v{vT+3}')
    e(f'v_lshl_add_u32 v{vVD}, v{vT}, 9, v{vT+3}')
    for i in range(1, 4):
        e(f'v_xor_b32 v{vVD+i}, {4*i*16}, v{vVD}')
    e(f'v_and_b32 v{vT+5}, 15, v{vLane}')
    e(f'v_lshrrev_b32 v{vT+6}, 4, v{vLane}')
    e(f'v_xor_b32 v{vT+7}, v{vT+5}, v{vT+6}')
    e(f'v_lshlrev_b32 v{vT+7}, 4, v{vT+7}')
    e(f'v_lshl_add_u32 v{vT+7}, v{vT+5}, 9, v{vT+7}')
    e(f's_and_b32 {sT0}, {sWave}, 3')
    e(f's_lshl_b32 {sT0}, {sT0}, 13')
    e(f's_lshl_b32 {sT1}, {sHalf}, 16')
    e(f's_add_u32 {sT0}, {sT0}, {sT1}')
    for jj in range(4):
        e(f'v_xor_b32 v{vVF+jj}, {jj*64}, v{vT+7}')
        e(f'v_add_u32 v{vKR+jj}, {sT0}, v{vVF+jj}')
        e(f'v_add_u32 v{vVF+jj}, {PBASE}, v{vVF+jj}')
    e(f'v_lshrrev_b32 v{vT+7}, 2, v{vLane}')
    e(f'v_and_b32 v{vT+8}, 7, v{vT+7}')
    e(f'v_lshlrev_b32 v{vT+8}, 1, v{vT+8}')
    e(f'v_bfe_u32 v{vT+9}, v{vLane}, 1, 1')
    e(f's_lshl_b32 {sT0}, {sWave}, 2')
    e(f'v_or_b32 v{vT+9}, {sT0}, v{vT+9}')
    e(f'v_xor_b32 v{vT+8}, v{vT+8}, v{vT+9}')
    e(f'v_lshlrev_b32 v{vT+8}, 4, v{vT+8}')
    e(f'v_lshl_add_u32 v{vT+8}, v{vT+7}, 9, v{vT+8}')
    e(f'v_and_b32 v{vT+9}, 1, v{vLane}')
    e(f'v_lshl_add_u32 v{vVR}, v{vT+9}, 3, v{vT+8}')
    e(f'v_xor_b32 v{vVR+1}, 32, v{vVR}')
    e(f'v_add_u32 v{vVR+2}, 0x10000, v{vVR}')
    e(f'v_add_u32 v{vVR+3}, 0x10000, v{vVR+1}')
    e(f'v_add_u32 v{vPR}, {PBASE}, v{vWS}')
    e(f's_lshl_b32 {sT0}, {sHalf}, 11')
    e(f's_bfe_u32 {sT1}, {sWave}, 0x10001')
    e(f's_lshl_b32 {sT1}, {sT1}, 10')
    e(f's_add_u32 {sT0}, {sT0}, {sT1}')
    e(f's_and_b32 {sT1}, {sWave}, 1')
    e(f's_lshl_b32 {sT1}, {sT1}, 3')
    e(f's_add_u32 {sT0}, {sT0}, {sT1}')
    e(f'v_add_u32 v{vPW}, {sT0}, v{vPR}')
    e(f'v_lshlrev_b32 v{vTR}, 5, v{vT+5}')
    e(f'v_add_u32 v{vTR}, {TAB_M}, v{vTR}')
    e(f's_lshl_b32 {sT0}, {sWave}, 2')
    e(f'v_add_u32 v{vTW}, {sT0}, v{vTR}')
    e(f'v_lshlrev_b32 v{vOut}, 9, v{vT+5}')
    e(f'v_lshl_add_u32 v{vOut}, v{vT+6}, 3, v{vOut}')
    e(f's_lshl_b32 {sT0}, {sWave}, 6')
    e(f'v_add_u32 v{vOut}, {sT0}, v{vOut}')
    e(f's_and_b32 {sT0}, {sHead}, 63')
    e(f's_lshl_b32 {sT0}, {sT0}, 2')
    e(f'v_mov_b32 v{vFlag}, {sT0}')
    e(f's_lshr_b32 {sT0}, {sHead}, 6')
    e(f's_lshl_b32 {sBit}, 1, {sT0}')
    if spread:
        e(f's_bfe_u32 {sSel}, {sHead}, 0x30003')
    else:
        e(f's_mov_b32 {sSel}, 0')
    e(f's_cmp_eq_u32 {sWave}, 0')
    e(f's_cselect_b32 {sSel}, {sSel}, 99')
    for r in range(8): e(f'v_mov_b32 v{vAcc+r}, 0')
    e(f's_cmp_eq_u32 {sRole}, 1')
    e(f's_cbranch_scc1 L_roleB')

    def body(role):
        T = TB if role else TAe
        R = 'B' if role else 'A'
        vm = VM(e); vm.ops = list(vm0.ops)
        NT = (T + 1) // 2
        if T % 2 or frac:
            for r in range(4): e(f'v_mov_b32 v{vS+4*(NT-1)+r}, 0xff800000')
        SH = T - 1 if frac else -1
        if frac:
            e(f's_cmp_lt_u32 {sWave}, {2*frac}')
            off = (31 - TA if role else 31) * 32768
            e(f's_mov_b32 {sT0}, {off}')
            if role == 0: e(f's_cselect_b32 s60, {sT0}, 0x40000000')
            else: e(f's_cselect_b32 s60, 0x40000000, {sT0}')
            e(f's_and_b32 {sT0}, {sWave}, 3')
            e(f's_cmp_lt_u32 {sT0}, {frac}')
            if role == 0: e(f's_cselect_b32 s61, {sHalf}, 7')
            else: e(f's_cselect_b32 s61, 7, {sHalf}')
        issued = LA + 1
        sw = (T if LAsw is None else LAsw)
        def refill(n_free_upto):
            nonlocal issued
            cur = n_free_upto + 1
            la = LA if cur < sw else LA2
            while issued < 2 * T and issued <= cur + la and issued <= n_free_upto + 4:
                dma(vm, issued, T, SH); issued += 1
        FA0 = max(early,0) + 4
        FB0 = 1
        flag_pos = {}
        for n in range(T):
            e.c(f'---- {R} K step {n}')
            if hand == 'poison' and role == 0 and n == FA0:
                vm.wait(('dma', n), 'poison')
            else:
                vm.wait(('dma', n))
            e('s_barrier')
            if n == 0: stamp(1)
            if stamps > 1: stamp(16+n)
            refill(n - 1)
            if n == early and not noend:
                if hand == 'poison' and role == 0:
                    for r in range(4): e(f'v_mov_b32 v{vPart+r}, -1')
                    ws_stores(vPart, vm, 'poison', same=True)
                if hand == 'toggle' and 'o' in parts:
                    ws_loads(vOld, vm, 'old')
                if hand == 'tag':
                    e(f'v_mov_b32 v{vOld+1}, 0')
                    e(f'buffer_load_dword v{vOld}, v{vOld+1}, {SW}, 0 offen offset:12 {ldf}'); vm.issue('old')
            if hand == 'poison' and role == 0 and FA0 <= n < FA0 + 8 and not noend:
                e(f's_cmp_lg_u32 {sSel}, {n-FA0}')
                e(f's_cbranch_scc1 L_noflag_{R}{n}')
                e(f'v_mov_b32 v{vLB}, {sBit}')
                e(f's_mov_b64 exec, 1')
                e(f'buffer_atomic_or v{vLB}, v{vFlag}, {SD}, 0 offen sc1')
                e(f's_mov_b64 exec, -1')
                e.label(f'L_noflag_{R}{n}')
            if n == 0:
                for j in range(8):
                    e(f'ds_read_b128 v[{vQ+4*j}:{vQ+4*j+3}], v{vVF+(j&3)} offset:{(j>>2)*256}')
            e(f's_cmp_lg_u32 {"s61" if n == SH else sHalf}, {n&1}')
            e(f's_cbranch_scc1 L_kskip_{R}{n}')
            so = ((n >> 1) & 1) * 32768
            for j in range(8):
                e(f'ds_read_b128 v[{vKF+4*j}:{vKF+4*j+3}], v{vKR+(j&3)} offset:{so+(j>>2)*256}')
            d = vS + 4 * (n >> 1)
            for j in range(8):
                e(f's_waitcnt lgkmcnt({7-j})')
                cin = '0' if j == 0 else f'v[{d}:{d+3}]'
                e(f'v_mfma_f32_16x16x32_bf16 v[{d}:{d+3}], v[{vKF+4*j}:{vKF+4*j+3}], v[{vQ+4*j}:{vQ+4*j+3}], {cin}')
            e.label(f'L_kskip_{R}{n}')
            if n == 0: e('s_waitcnt lgkmcnt(0)')
        e.c(f'---- {R} softmax')
        stamp(2)
        e('s_nop 7')
        e('s_nop 1')
        NS_ = 4 * NT
        e(f'v_max3_f32 v{vM}, v{vS}, v{vS+1}, v{vS+2}')
        i = 3
        while i + 1 < NS_:
            e(f'v_max3_f32 v{vM}, v{vM}, v{vS+i}, v{vS+i+1}'); i += 2
        if i < NS_: e(f'v_max_f32 v{vM}, v{vM}, v{vS+i}')
        def xg(reg, op):
            e(f'v_mov_b32 v{vT}, v{reg}')
            e('s_nop 1')
            e(f'v_permlane32_swap_b32 v{reg}, v{vT}')
            e(f'{op} v{reg}, v{reg}, v{vT}')
            e(f'v_mov_b32 v{vT}, v{reg}')
            e('s_nop 1')
            e(f'v_permlane16_swap_b32 v{reg}, v{vT}')
            e(f'{op} v{reg}, v{reg}, v{vT}')
        xg(vM, 'v_max_f32')
        e(f'ds_write_b32 v{vTW}, v{vM}')
        e('s_waitcnt lgkmcnt(0)')
        e('s_barrier')
        e(f'ds_read_b128 v[{vKF}:{vKF+3}], v{vTR}')
        e(f'ds_read_b128 v[{vKF+4}:{vKF+7}], v{vTR} offset:16')
        refill(T - 1)
        e('s_waitcnt lgkmcnt(0)')
        e(f'v_max3_f32 v{vM}, v{vKF}, v{vKF+1}, v{vKF+2}')
        e(f'v_max3_f32 v{vT}, v{vKF+3}, v{vKF+4}, v{vKF+5}')
        e(f'v_max3_f32 v{vM}, v{vM}, v{vKF+6}, v{vKF+7}')
        e(f'v_max_f32 v{vM}, v{vM}, v{vT}')
        e(f'v_mul_f32 v{vM}, {sC}, v{vM}')
        for i in range(NS_):
            e(f'v_fma_f32 v{vS+i}, v{vS+i}, {sC}, -v{vM}')
        for i in range(NS_):
            e(f'v_exp_f32 v{vS+i}, v{vS+i}')
        e('s_nop 0')
        for i in range(NT):
            e(f'v_cvt_pk_bf16_f32 v{vP+2*i}, v{vS+4*i}, v{vS+4*i+1}')
            e(f'v_cvt_pk_bf16_f32 v{vP+2*i+1}, v{vS+4*i+2}, v{vS+4*i+3}')
            if i < NPE // 2:
                e(f'ds_write_b64 v{vPW}, v[{vP+2*i}:{vP+2*i+1}] offset:{i*4096}')
        e(f'v_add_f32 v{vL}, v{vS}, v{vS+1}')
        e(f'v_add_f32 v{vT+1}, v{vS+2}, v{vS+3}')
        for i in range(4, NS_, 2):
            e(f'v_add_f32 v{vL}, v{vL}, v{vS+i}')
            e(f'v_add_f32 v{vT+1}, v{vT+1}, v{vS+i+1}')
        e(f'v_add_f32 v{vL}, v{vL}, v{vT+1}')
        xg(vL, 'v_add_f32')
        e(f'ds_write_b32 v{vTW}, v{vL} offset:512')
        stamp(3)
        for t in range(T):
            n = T + t
            e.c(f'---- {R} V step {t}')
            if role == 1 and t == T - partstep and not noend and 'L' in parts:
                ws_loads(vPart, vm, 'part')
            vm.wait(('dma', n), extra=' lgkmcnt(0)')
            e('s_barrier')
            if t == T - 1: stamp(4)
            if stamps > 1: stamp(40+t)
            if hand == 'poison' and role == 1 and not noend:
                if FB0 <= t < FB0 + 8:
                    e(f's_cmp_lg_u32 {sSel}, {t-FB0}')
                    e(f's_cbranch_scc1 L_nopoll_{t}')
                    e(f'buffer_load_dword v{vLB}, v{vFlag}, {SD}, 0 offen sc1')
                    e.label(f'L_nopoll_{t}')
                    flag_pos[t] = len(vm.ops)
                if t == FB0 + 7 + 3:
                    assert t < T - partstep
                    e(f's_cmp_lg_u32 {sWave}, 0')
                    e(f's_cbranch_scc1 L_flagok')
                    e(f's_waitcnt vmcnt({len(vm.ops) - flag_pos[FB0+7]})')
                    e.label(f'L_flagchk')
                    e(f'v_readfirstlane_b32 {sT0}, v{vLB}')
                    e(f's_nop 3')
                    e(f's_and_b32 {sT0}, {sT0}, {sBit}')
                    e(f's_cbranch_scc1 L_flagok')
                    e(f's_sleep 8')
                    e(f'buffer_load_dword v{vLB}, v{vFlag}, {SD}, 0 offen sc1')
                    e(f's_waitcnt vmcnt(0)')
                    e(f's_branch L_flagchk')
                    e.label(f'L_flagok')
            refill(n - 1)
            pe = (t % NPE) * 2048
            e(f'ds_read_b128 v[{vPF}:{vPF+3}], v{vPR} offset:{pe}')
            pos = SLOT_POS[n % 4]
            pair = pos >> 16; so = pos & 0xffff
            def trd(u, dt):
                for hh in range(2):
                    r = vVF + 8 * u + 4 * dt + 2 * hh
                    e(f'ds_read_b64_tr_b16 v[{r}:{r+1}], v{vVR+2*pair+dt} offset:{so+(2*u+hh)*8192}')
            trd(0, 0); trd(0, 1)
            e(f'ds_read_b128 v[{vPF+4}:{vPF+7}], v{vPR} offset:{pe+1024}')
            trd(1, 0); trd(1, 1)
            late = [i for i in range(NPE // 2, NT) if t == 2 * (i - NPE // 2) + 2]
            nl = 0
            if t == 1:
                e(f'ds_read_b128 v[{vKF}:{vKF+3}], v{vTR} offset:512')
                e(f'ds_read_b128 v[{vKF+4}:{vKF+7}], v{vTR} offset:528'); nl += 2
            for i in late:
                e(f'ds_write_b64 v{vPW}, v[{vP+2*i}:{vP+2*i+1}] offset:{(i-NPE//2)*4096}'); nl += 1
            cnt = [7, 5, 2, 0]
            k = 0
            for u in range(2):
                for dt in range(2):
                    e(f's_waitcnt lgkmcnt({cnt[k]+nl})'); k += 1
                    a = vVF + 8 * u + 4 * dt
                    e(f'v_mfma_f32_16x16x32_bf16 v[{vAcc+4*dt}:{vAcc+4*dt+3}], v[{a}:{a+3}], v[{vPF+4*u}:{vPF+4*u+3}], v[{vAcc+4*dt}:{vAcc+4*dt+3}]')
            if t == 1:
                e('s_waitcnt lgkmcnt(0)')
                e(f'v_add_f32 v{vKF}, v{vKF}, v{vKF+1}')
                e(f'v_add_f32 v{vKF+2}, v{vKF+2}, v{vKF+3}')
                e(f'v_add_f32 v{vKF+4}, v{vKF+4}, v{vKF+5}')
                e(f'v_add_f32 v{vKF+6}, v{vKF+6}, v{vKF+7}')
                e(f'v_add_f32 v{vKF}, v{vKF}, v{vKF+2}')
                e(f'v_add_f32 v{vKF+4}, v{vKF+4}, v{vKF+6}')
                e(f'v_add_f32 v{vL}, v{vKF}, v{vKF+4}')
                e(f'v_log_f32 v{vT}, v{vL}')
                e(f'v_rcp_f32 v{vL}, v{vL}')
                e('s_nop 0')
                e(f'v_add_f32 v{vM}, v{vM}, v{vT}')
                if hand == 'tag' and not noend:
                    e(f's_mov_b32 {sT0}, 0x9e3779b1')
                    e(f'v_mul_lo_u32 v{vOld}, v{vOld}, {sT0}')
                    e(f'v_add_u32 v{vOld}, 0x7f4a7c15, v{vOld}')
                    if role == 0:
                        for i in range(3): e(f'v_mov_b32 v{vPart+4*i+3}, v{vOld}')
                        e(f'v_mov_b32 v{vPart+10}, v{vM}')
                if hand == 'toggle' and role == 0 and not noend:
                    for r in range(9): e(f'v_not_b32 v{vOld+r}, v{vOld+r}')
                    e(f'v_bfi_b32 v{vPart+8}, 1, v{vOld+8}, v{vM}')
        e.c(f'---- {R} epilogue')
        if noend:
            if role == 1: stamp(5)
        elif role == 0:
            e('s_nop 7')
            for r in range(8):
                e(f'v_mul_f32 v{vPart+PX(r)}, v{vAcc+r}, v{vL}')
            if hand == 'tag': pass
            elif hand == 'poison':
                for r in range(8): e(f'v_min_u32 v{vPart+r}, -2, v{vPart+r}')
                e(f'v_min_u32 v{vPart+8}, -2, v{vM}')
            elif hand == 'toggle':
                for r in range(8): e(f'v_bfi_b32 v{vPart+r}, 1, v{vOld+r}, v{vPart+r}')
            else:
                e(f'v_mov_b32 v{vPart+8}, v{vM}')
            if 'S' in parts: ws_stores(vPart)
            if hand in ('toggle','tag') and 'F' in parts:
                e('s_waitcnt vmcnt(0)')
                e('s_barrier')
                e(f's_cmp_lg_u32 {sWave}, 0')
                e(f's_cbranch_scc1 L_adone')
                e(f'v_mov_b32 v{vLB}, {sBit}')
                e(f's_mov_b64 exec, 1')
                e(f'buffer_atomic_or v{vLB}, v{vFlag}, {SD}, 0 offen sc1')
                e(f's_mov_b64 exec, -1')
                e.label('L_adone')
        else:
            e(f's_mov_b32 {sCnt}, 0')
            e.label('L_chk')
            e('s_waitcnt vmcnt(0)')
            if hand == 'poison':
                e(f'v_max3_u32 v{vT}, v{vPart}, v{vPart+1}, v{vPart+2}')
                e(f'v_max3_u32 v{vT+1}, v{vPart+3}, v{vPart+4}, v{vPart+5}')
                e(f'v_max3_u32 v{vT+2}, v{vPart+6}, v{vPart+7}, v{vPart+8}')
                e(f'v_max3_u32 v{vT}, v{vT}, v{vT+1}, v{vT+2}')
                e(f'v_cmp_eq_u32 vcc, -1, v{vT}')
                e(f's_cbranch_vccz L_got')
                e(f's_sleep 2')
                ws_loads(vPart)
                e(f's_branch L_chk')
            elif hand in ('toggle','tag') and parts == 'oSLOF':
                if hand == 'tag':
                    e(f'v_xor_b32 v{vKF}, v{vPart+3}, v{vOld}')
                    e(f'v_xor_b32 v{vKF+1}, v{vPart+7}, v{vOld}')
                    e(f'v_xor_b32 v{vKF+2}, v{vPart+11}, v{vOld}')
                    e(f'v_or3_b32 v{vKF}, v{vKF}, v{vKF+1}, v{vKF+2}')
                    e(f'v_cmp_ne_u32 vcc, 0, v{vKF}')
                else:
                    for r in range(9): e(f'v_xor_b32 v{vKF+r}, v{vPart+r}, v{vOld+r}')
                    for r in range(0, 8, 2): e(f'v_and_b32 v{vKF+r}, v{vKF+r}, v{vKF+r+1}')
                    e(f'v_and_b32 v{vKF}, v{vKF}, v{vKF+2}')
                    e(f'v_and_b32 v{vKF+4}, v{vKF+4}, v{vKF+6}')
                    e(f'v_and_b32 v{vKF}, v{vKF}, v{vKF+8}')
                    e(f'v_and_b32 v{vKF+4}, 1, v{vKF+4}')
                    e(f'v_and_b32 v{vKF}, v{vKF}, v{vKF+4}')
                    e(f'v_cmp_eq_u32 vcc, 0, v{vKF}')
                e(f's_cbranch_vccz L_got')
                e(f's_add_u32 {sCnt}, {sCnt}, 1')
                e(f's_and_b32 {sT0}, {sCnt}, 7')
                e(f's_cbranch_scc1 L_retry')
                e(f'buffer_load_dword v{vLB}, v{vFlag}, {SD}, 0 offen sc1')
                e('s_waitcnt vmcnt(0)')
                e(f'v_readfirstlane_b32 {sT0}, v{vLB}')
                e(f's_nop 3')
                e(f's_and_b32 {sT0}, {sT0}, {sBit}')
                e(f's_cbranch_scc0 L_retry')
                ws_loads(vPart)
                e('s_waitcnt vmcnt(0)')
                e(f's_branch L_got')
                e.label('L_retry')
                e(f's_sleep 2')
                ws_loads(vPart)
                e(f's_branch L_chk')
            e.label('L_got')
            stamp(5)
            if hand == 'toggle':
                e(f'v_and_b32 v{vPart+8}, -2, v{vPart+8}')
            e(f'v_sub_f32 v{vT}, v{vM}, v{vPart+PX(8)}')
            e(f'v_exp_f32 v{vT}, v{vT}')
            if hand == 'toggle':
                for r in range(8): e(f'v_and_b32 v{vPart+r}, -2, v{vPart+r}')
            else:
                e('s_nop 0')
            e(f'v_add_f32 v{vT}, 1.0, v{vT}')
            e(f'v_rcp_f32 v{vT}, v{vT}')
            e('s_nop 0')
            e(f'v_sub_f32 v{vT+1}, 1.0, v{vT}')
            e(f'v_mul_f32 v{vT+1}, v{vT+1}, v{vL}')
            for r in range(8):
                e(f'v_mul_f32 v{vPart+PX(r)}, v{vPart+PX(r)}, v{vT}')
            for r in range(8):
                e(f'v_fmac_f32 v{vPart+PX(r)}, v{vAcc+r}, v{vT+1}')
            for r in range(4):
                e(f'v_cvt_pk_bf16_f32 v{vT+2+r}, v{vPart+PX(2*r)}, v{vPart+PX(2*r+1)}')
            if 'O' in parts:
                e(f'buffer_store_dwordx2 v[{vT+2}:{vT+3}], v{vOut}, {SO}, 0 offen {outf}')
                e(f'buffer_store_dwordx2 v[{vT+4}:{vT+5}], v{vOut}, {SO}, 0 offen offset:32 {outf}')
        if stamps:
            stamp(6)
            e(f's_lshl_b32 {sT0}, s2, 3')
            e(f's_add_u32 {sT0}, {sT0}, {sWave}')
            e(f's_lshl_b32 {sT0}, {sT0}, 8')
            e(f's_add_u32 {sT0}, {sT0}, 0x10000000')
            e(f's_add_u32 s52, s14, {sT0}')
            e(f's_addc_u32 s53, s15, 0')
            e(f's_mov_b32 s54, 256')
            e(f's_mov_b32 s55, 0x20000')
            e(f'v_writelane_b32 v{NV-1}, {sRole}, 11')
            e(f'buffer_store_dword v{NV-1}, v{vWS4}, s[52:55], 0 offen')
        e('s_endpgm')

    body(0)
    e.label('L_roleB')
    body(1)
    e.label('L_end')
    e('s_endpgm')
    txt = e.text()
    if name != NAME: txt = txt.replace('L_', f'L{zlib.crc32(name.encode())%99991}_')
    return txt, NV

from gen_attn import HEADER
def wrap(kernels, single=True):
    s = HEADER
    if single:
        s += f'; @launch grid=(256,1,1) block=(512,1,1) lds={LDS_BYTES}\n'
    else:
        for (n, t, nv) in kernels:
            s += f'; @launch kernel={n} grid=(256,1,1) block=(512,1,1) lds={LDS_BYTES}\n'
    s += '.amdgcn_target "amdgcn-amd-amdhsa--gfx950"\n.text\n'
    for (n, t, nv) in kernels:
        s += f'.globl {n}\n.p2align 8\n.type {n},@function\n{n}:\n{t}'
    s += '.section .rodata,"a"\n'
    for (n, t, nv) in kernels:
        s += f'''.p2align 6
.amdhsa_kernel {n}
  .amdhsa_next_free_vgpr {nv}
  .amdhsa_next_free_sgpr 64
  .amdhsa_accum_offset {(nv+3)//4*4}
  .amdhsa_group_segment_fixed_size 0
  .amdhsa_kernarg_size 48
  .amdhsa_user_sgpr_count 2
  .amdhsa_user_sgpr_kernarg_segment_ptr 1
  .amdhsa_system_sgpr_workgroup_id_x 1
.end_amdhsa_kernel
'''
    return s

if __name__ == '__main__':
    t, nv = gen()
    open('standalone__softmax_full_bidir__sampling.s', 'w').write(wrap([(NAME, t, nv)]))
    print('written; lds', LDS_BYTES)
```

```python
import sys
sys.path.insert(0,'gen')
import gen2 as g
from mklist import desc, EMPTY
def spin(mult, idx_a=7, idx_b=6, ra=None, rb=None):
    s=f'''    s_cmp_ge_u32 s2, 1
    s_cbranch_scc1 L_send
    s_load_dwordx2 s[4:5], s[0:1], 40
    v_lshlrev_b32 v1, 11, v0
    s_waitcnt lgkmcnt(0)
    s_add_u32 s8, s4, 0x10000000
    s_addc_u32 s9, s5, 0
    s_mov_b32 s10, 0x80000
    s_mov_b32 s11, 0x20000
'''
    for i in range(4):
        s+=f'    s_mov_b32 s16, {i*64*2048}\n    buffer_load_dword v{2+i}, v1, s[8:11], s16 offen offset:{idx_a*4}\n    buffer_load_dword v{6+i}, v1, s[8:11], s16 offen offset:{idx_b*4}\n'
    s+='''    s_waitcnt vmcnt(0)
    v_min_u32 v2, v2, v3
    v_min_u32 v4, v4, v5
    v_min_u32 v2, v2, v4
    v_max_u32 v6, v6, v7
    v_max_u32 v8, v8, v9
    v_max_u32 v6, v6, v8
    s_mov_b32 s20, -1
    s_mov_b32 s21, 0
    s_nop 1
'''
    for l in range(64):
        s+=f'    v_readlane_b32 s22, v2, {l}\n    v_readlane_b32 s23, v6, {l}\n    s_nop 1\n'
        if ra is None or ra(l): s+='    s_min_u32 s20, s20, s22\n'
        if rb is None or rb(l): s+='    s_max_u32 s21, s21, s23\n'
    s+=f'''    s_sub_u32 s21, s21, s20
    s_min_u32 s21, s21, 20000
    s_mul_i32 s21, s21, {mult}
    s_memrealtime s[24:25]
    s_waitcnt lgkmcnt(0)
L_spin:
    s_memrealtime s[26:27]
    s_waitcnt lgkmcnt(0)
    s_sub_u32 s28, s26, s24
    s_cmp_lt_u32 s28, s21
    s_cbranch_scc1 L_spin
L_send:
    s_endpgm
'''
    return s
def mk(path, mult, a=7, b=6, ra=None, rb=None, **kw):
    t,nv=g.gen(name='main_kernel',stamps=1,**kw)
    ks={'main_kernel':(t,nv,512,g.LDS_BYTES,256),'spin_kernel':(spin(mult,a,b,ra,rb),16,64,0,1)}
    seq=['main_kernel','spin_kernel']
    s=g.HEADER
    for n in seq: s+=f'; @launch kernel={n} grid=({ks[n][4]},1,1) block=({ks[n][2]},1,1) lds={ks[n][3]}\n'
    s+='.amdgcn_target "amdgcn-amd-amdhsa--gfx950"\n.text\n'
    for n in seq: s+=f'.globl {n}\n.p2align 8\n.type {n},@function\n{n}:\n{ks[n][0]}'
    s+='.section .rodata,"a"\n'
    for n in seq: s+=desc(n,ks[n][1])
    open(path,'w').write(s)
if __name__=='__main__':
    kw=dict(TA=15,hand='tag',LA=2,LA2=3)
    isB=lambda l:(l>>3)&1==1
    isA=lambda l:(l>>3)&1==0
    mk('C0.s',0,**kw)
    mk('C1.s',2,**kw)
    mk('C2.s',8,6,6,isB,isB,**kw)
    mk('C3.s',8,4,4,isA,isA,**kw)
    mk('C4.s',8,4,6,isA,isB,**kw)
    mk('C5.s',8,7,1,**kw)
```

```python
import sys, itertools
sys.path.insert(0,'bench')
from asmlib import *
def stream_kernel(name, perm, wb, tb, xm={}, xw={}, LQ=8, jb=(10,11), xj={}, xt={}):
    s = kernel_head(name)
    s += f'''
    s_cmp_ge_u32 s2, 256
    s_cbranch_scc1 L_end_{name}
    s_load_dwordx4 s[4:7], s[0:1], 8
    v_lshrrev_b32 v1, 6, v0
    v_and_b32 v2, 63, v0
    s_mov_b32 s21, 0
    v_readfirstlane_b32 s20, v1
'''
    for k in range(8):
        s += f'    s_bfe_u32 s22, s2, {0x10000+k}\n    s_lshl_b32 s22, s22, {perm[k]}\n    s_or_b32 s21, s21, s22\n'
    s += '    s_mov_b32 s24, 0\n'
    for k in range(3):
        s += f'    s_bfe_u32 s22, s20, {0x10000+k}\n    s_lshl_b32 s22, s22, {wb[k]}\n    s_or_b32 s24, s24, s22\n'
    for src,d in (('s2',xm),('s20',xw)):
        for ab,m in d.items():
            s += f'    s_and_b32 s22, {src}, {m}\n    s_bcnt1_i32_b32 s22, s22\n    s_and_b32 s22, s22, 1\n    s_lshl_b32 s22, s22, {ab}\n    s_xor_b32 s24, s24, s22\n'
    s += f'''    s_lshl_b32 s26, s20, 12
    v_lshlrev_b32 v7, 4, v2
    s_waitcnt lgkmcnt(0)
    s_add_u32 s8, s4, s21
    s_addc_u32 s9, s5, 0
    s_mov_b32 s10, {1<<19}
    s_mov_b32 s11, 0x20000
    s_add_u32 s12, s6, s21
    s_addc_u32 s13, s7, 0
    s_mov_b32 s14, {1<<19}
    s_mov_b32 s15, 0x20000
'''
    T=16; iq=0
    def issue_upto(q):
        nonlocal iq
        x=''; cur=None
        while iq<min(q,8*T):
            n=iq//4; j=iq%4
            t=n%T
            off=sum(((t>>jj)&1)<<tb[jj] for jj in range(4))+sum(((j>>jj)&1)<<jb[jj] for jj in range(2))
            for ab,m in xj.items(): off^=(bin(j&m).count('1')&1)<<ab
            for ab,m in xt.items(): off^=(bin(t&m).count('1')&1)<<ab
            x+=f'    s_add_u32 m0, s26, {(n%4)*32768+j*1024}\n    s_xor_b32 s23, s24, {off}\n'
            srd='s[8:11]' if n<T else 's[12:15]'
            x+=f'    buffer_load_dwordx4 v7, {srd}, s23 offen nt lds\n'
            iq+=1
        return x
    for q in range(4,4+LQ+4,4):
        s+=issue_upto(min(q,4+LQ))
        if iq<4+LQ: s+='    s_barrier\n'
    for n in range(2*T):
        s+=f'    s_waitcnt vmcnt({iq-4*(n+1)})\n    s_barrier\n'
        s+=issue_upto(4*(n+1)+LQ)
    s += f'L_end_{name}:\n    s_endpgm\n'
    return s,16
def emit(cfgs,prefix,rounds):
    names=[];files=[]
    for c0 in range(0,len(cfgs),60):
        txt='';desc='';hdr=''
        fn=f'{prefix}_{c0//60}'
        for nm,c in cfgs[c0:c0+60]:
            name=f'{nm}_kernel'
            s,nv=stream_kernel(name,**c)
            txt+=s; desc+='.p2align 6\n'+kernel_desc(name,nv)
            hdr+=f'; @launch kernel={name} grid=(256,1,1) block=(512,1,1) lds=160768\n'
            names.append(f'{fn}.co@{name}:256:512:160768')
        open(fn+'.s','w').write(hdr+HDR+txt+'.section .rodata,"a"\n'+desc)
        build(fn+'.s',fn+'.co'); files.append('bench/'+fn+'.co')
    open(prefix+'_run.sh','w').write(f'./runner2 -n {rounds} -mode 2 -tm 3 -rnd 1 '+' '.join(names)+'\n')
    print(len(names),files)
if __name__=='__main__':
    h5=[22,23,26,19,20,21,24,25]
    B=dict(perm=h5,wb=(12,13,14))
    cfgs=[
     ('base',{**B,'tb':(15,16,17,18)}),
     ('base_w02',{**B,'tb':(15,16,17,18),'xw':{17:1,18:4}}),
     ('xj_q',{**B,'tb':(15,16,17,18),'xj':{17:1,18:2}}),
     ('xj_q_w',{**B,'tb':(15,16,17,18),'xj':{17:1,18:2},'xw':{17:1,18:4}}),
     ('xj_h',{**B,'tb':(15,16,17,18),'xj':{17:2},'xw':{18:4}}),
     ('xj_h2',{**B,'tb':(15,16,17,18),'xj':{18:2},'xw':{17:1}}),
     ('xj_1516',{**B,'tb':(15,16,17,18),'xj':{15:1,16:2},'xw':{17:1,18:4}}),
     ('j1718',{**B,'jb':(17,18),'tb':(10,11,15,16),'xw':{10:1,11:2}}),
     ('j1516',{**B,'jb':(15,16),'tb':(10,11,17,18),'xw':{10:1,11:2,17:1,18:4}}),
     ('j1015',{**B,'jb':(10,15),'tb':(11,16,17,18),'xw':{11:1,17:2,18:4}}),
     ('wj',{**B,'tb':(15,16,17,18),'xw':{10:1,11:2,17:1,18:4}}),
     ('wj2',{**B,'tb':(15,16,17,18),'xw':{10:2,11:4,17:1,18:4}}),
     ('gj',{**B,'tb':(15,16,17,18),'xw':{17:1,18:4},'xm':{10:64,11:128}}),
     ('jw',dict(perm=h5,wb=(10,11,14),jb=(12,13),tb=(15,16,17,18))),
     ('jw2',dict(perm=h5,wb=(10,11,12),jb=(13,14),tb=(15,16,17,18))),
     ('jwx',dict(perm=h5,wb=(10,11,14),jb=(12,13),tb=(15,16,17,18),xw={12:1,13:2})),
     ('tw',{**B,'tb':(15,16,17,18),'xw':{17:1,18:4},'xt':{12:1,13:2,14:4}}),
     ('w0w2_1516',{**B,'tb':(15,16,17,18),'xw':{17:1,18:4,15:2}}),
     ('gx',{**B,'tb':(15,16,17,18),'xw':{17:1,18:4},'xm':{15:1,16:2}}),
     ('gx2',{**B,'tb':(15,16,17,18),'xw':{17:1,18:4},'xm':{15:8,16:16}}),
     ('gx3',{**B,'tb':(15,16,17,18),'xw':{17:1,18:4},'xm':{15:64,16:128}}),
    ]
    emit(cfgs,'s9',31)
```

```python
import sys, random
sys.path.insert(0,'bench')
from asmlib import *
import gen_stream9 as g9
def rand_map(seed):
    r=random.Random(seed)
    while True:
        M=[r.randrange(1,256) for _ in range(8)]
        rows=M[:]; rank=0
        for b in range(8):
            p=[i for i in range(rank,8) if rows[i]>>b&1]
            if not p: continue
            rows[rank],rows[p[0]]=rows[p[0]],rows[rank]
            for i in range(8):
                if i!=rank and rows[i]>>b&1: rows[i]^=rows[rank]
            rank+=1
        if rank==8: return M
def kern(name,M,tb,xw):
    s = kernel_head(name)
    s += f'''
    s_cmp_ge_u32 s2, 256
    s_cbranch_scc1 L_end_{name}
    s_load_dwordx4 s[4:7], s[0:1], 8
    v_lshrrev_b32 v1, 6, v0
    v_and_b32 v2, 63, v0
    s_mov_b32 s24, 0
    v_readfirstlane_b32 s20, v1
'''
    for k,m in enumerate(M):
        s += f'    s_and_b32 s22, s2, {m}\n    s_bcnt1_i32_b32 s22, s22\n    s_and_b32 s22, s22, 1\n    s_lshl_b32 s22, s22, {19+k}\n    s_xor_b32 s24, s24, s22\n'
    for ab,m in xw.items():
        s += f'    s_and_b32 s22, s20, {m}\n    s_bcnt1_i32_b32 s22, s22\n    s_and_b32 s22, s22, 1\n    s_lshl_b32 s22, s22, {ab}\n    s_xor_b32 s24, s24, s22\n'
    s += f'''    s_lshl_b32 s26, s20, 12
    s_or_b32 s24, s24, s26
    v_lshlrev_b32 v7, 4, v2
    s_waitcnt lgkmcnt(0)
    s_mov_b32 s8, s4
    s_mov_b32 s9, s5
    s_mov_b32 s10, 0x8000000
    s_mov_b32 s11, 0x20000
    s_mov_b32 s12, s6
    s_mov_b32 s13, s7
    s_mov_b32 s14, 0x8000000
    s_mov_b32 s15, 0x20000
'''
    T=16; issued=0
    def dma(n):
        t=n%T; off=tb(t)
        srd='s[8:11]' if n<T else 's[12:15]'
        x=f'    s_add_u32 m0, s26, {(n%4)*32768}\n    s_xor_b32 s23, s24, {off}\n'
        for j in range(4): x+=f'    buffer_load_dwordx4 v7, {srd}, s23 offen offset:{j*1024} nt lds\n'
        return x
    for n in range(3):
        s+=dma(n); issued+=1
        if n<2: s+='    s_barrier\n'
    for n in range(2*T):
        s+=f'    s_waitcnt vmcnt({(issued-n-1)*4})\n    s_barrier\n'
        if n>=1 and issued<2*T: s+=dma(issued); issued+=1
    s += f'L_end_{name}:\n    s_endpgm\n'
    return s
def bits(tp): return lambda t: sum(((t>>j)&1)<<tp[j] for j in range(4))
ORD={'t':(bits((15,16,17,18)),{17:1,18:4}),'q':(bits((17,18,15,16)),{17:1,18:4}),'n':(bits((15,16,17,18)),{}),
     'g':(lambda t: ((t*7+ (t>>2))&15 if False else ((t*5)&15))<<15,{17:1,18:4}),
     }
h5=[22,23,26,19,20,21,24,25]
maps={'h5':[1<<h5.index(19+k) for k in range(8)]}
for i in range(13): maps[f'r{i}']=rand_map(i)
txt='';desc='';hdr='';names=[]
for mn,M in maps.items():
    for on,(tb,xw) in ORD.items():
        name=f'{on}_{mn}_kernel'
        txt+=kern(name,M,tb,xw); desc+='.p2align 6\n'+kernel_desc(name,16)
        hdr+=f'; @launch kernel={name} grid=(256,1,1) block=(512,1,1) lds=160768\n'
        names.append(f's11.co@{name}:256:512:160768')
open('s11.s','w').write(hdr+HDR+txt+'.section .rodata,"a"\n'+desc)
build('s11.s','s11.co')
open('s11_run.sh','w').write('./runner2 -n 31 -mode 2 -tm 3 $1 $2 '+' '.join(names)+'\n')
print(len(names))
```
